```python
import torch

def _softmax(x, axis=-1):
    return torch.softmax(x, dim=axis)
def _gelu(x):
    return torch.nn.functional.gelu(x, approximate="tanh")
def _silu(x):
    return torch.nn.functional.silu(x)
def _sigmoid(x):
    return torch.sigmoid(x)
def _layernorm(x, axis=-1, eps=1e-5):
    m = x.mean(dim=axis, keepdim=True)
    v = x.var(dim=axis, keepdim=True, unbiased=False)
    return (x - m) / torch.sqrt(v + eps)
def _scatter_add(tgt, idx, src, axis=0):
    return tgt.clone().index_add_(axis, idx, src)
def _segment_sum(src, seg, n):
    out = torch.zeros((n,) + src.shape[1:], dtype=src.dtype)
    return out.index_add_(0, seg, src)
def _pad(x, pw):
    flat = tuple(v for pair in reversed(pw) for v in pair)
    return torch.nn.functional.pad(x, flat)

kernel_name = 'interleave_layers__linear_kernel_hedgehog__mixer_s_mlp__prompt'

def setup_inputs():

    _w = (lambda a: (lambda t: t.to(torch.bfloat16) if t.is_floating_point() else t)(torch.as_tensor(a)))
    def _A_setup():
        B, S, D, H = 1, 2048, 640, 32
        Dh = D // H
        return {
            "x": _w((lambda *s: torch.randn(*s, dtype=torch.bfloat16) * 0.05)(B, S, D)),
            "wqkv": _w((lambda *s: torch.randn(*s, dtype=torch.bfloat16) * 0.4)(D, 3 * D)),
            "w_phi": _w((lambda *s: torch.randn(*s, dtype=torch.bfloat16) * 0.4)(H, Dh, Dh) * (Dh ** -0.5)),
            "wo": _w((lambda *s: torch.randn(*s, dtype=torch.bfloat16) * 0.05)(D, D)),
        }
    _A_in = _A_setup()

    def _B_setup():
        B, S, D, F = 1, 2048, 640, 1536
        return {
            "x":  _w((lambda *s: torch.randn(*s, dtype=torch.bfloat16) * 0.05)(B, S, D)),
            "w1": _w((lambda *s: torch.randn(*s, dtype=torch.bfloat16) * 3.2)(D, D) * (D ** -0.5)),
            "w2": _w((lambda *s: torch.randn(*s, dtype=torch.bfloat16) * 3.2)(D, D) * (D ** -0.5)),
            "w3": _w((lambda *s: torch.randn(*s, dtype=torch.bfloat16) * 3.2)(D, F) * (D ** -0.5)),
            "w4": _w((lambda *s: torch.randn(*s, dtype=torch.bfloat16) * 3.2)(F, D) * (F ** -0.5)),
        }
    _B_in = _B_setup()

    return {
        "A_x": _A_in["x"],
        "A_wqkv": _A_in["wqkv"],
        "A_w_phi": _A_in["w_phi"],
        "A_wo": _A_in["wo"],
        "B_x": _B_in["x"],
        "B_w1": _B_in["w1"],
        "B_w2": _B_in["w2"],
        "B_w3": _B_in["w3"],
        "B_w4": _B_in["w4"],
    }

def reference(A_x, A_wqkv, A_w_phi, A_wo, B_x, B_w1, B_w2, B_w3, B_w4):
    def _A_ref(x, wqkv, w_phi, wo):
        B, S, D = x.shape
        H = 32; Dh = D // H
        qkv = (lambda x, *d: x.permute(*d))((x @ wqkv).reshape(B, S, 3, H, Dh), 2, 0, 3, 1, 4)
        q, k, v = qkv[0], qkv[1], qkv[2]
        pq = torch.einsum("bhsd,hdf->bhsf", q, w_phi)
        pk = torch.einsum("bhsd,hdf->bhsf", k, w_phi)
        phi_q = torch.concatenate([_softmax(pq, axis=-1), _softmax(-pq, axis=-1)], axis=-1)
        phi_k = torch.concatenate([_softmax(pk, axis=-1), _softmax(-pk, axis=-1)], axis=-1)
        kv = torch.einsum("bhsf,bhsd->bhfd", phi_k, v)
        z  = torch.einsum("bhsf->bhf", phi_k)
        num = torch.einsum("bhqf,bhfd->bhqd", phi_q, kv)
        den = torch.einsum("bhqf,bhf->bhq", phi_q, z)[..., None] + 1e-6
        o = num / den
        return (lambda x, *d: x.permute(*d))(o, 0, 2, 1, 3).reshape(B, S, D) @ wo

    def _B_ref(x, w1, w2, w3, w4):
        B, S, D = x.shape
        h = _gelu(_layernorm(x, axis=-1) @ w1)
        c = D // 4
        g0 = _pad(h[:, :, 0*c:1*c], ((0, 0), (1, 0), (0, 0)))[:, :S, :]
        g1 = _pad(h[:, :, 1*c:2*c], ((0, 0), (0, 1), (0, 0)))[:, 1:, :]
        g2 = _pad(h[:, :, 2*c:3*c], ((0, 0), (2, 0), (0, 0)))[:, :S, :]
        g3 = _pad(h[:, :, 3*c:   ], ((0, 0), (0, 2), (0, 0)))[:, 2:, :]
        hs = torch.concatenate([g0, g1, g2, g3], axis=-1) @ w2
        x1 = x + hs
        h2 = _gelu(_layernorm(x1, axis=-1) @ w3) @ w4
        return x1 + h2

    x = A_x
    x = x + _A_ref(_layernorm(x, axis=-1), A_wqkv, A_w_phi, A_wo)
    x = x + _B_ref(_layernorm(x, axis=-1), B_w1, B_w2, B_w3, B_w4)
    x = x + _A_ref(_layernorm(x, axis=-1), A_wqkv, A_w_phi, A_wo)
    x = x + _B_ref(_layernorm(x, axis=-1), B_w1, B_w2, B_w3, B_w4)
    return x
```

```python
import re

REG_RE = re.compile(r'^(-?)(?:abs\()?([vas])(\d+)\)?$')
RNG_RE = re.compile(r'^(-?)([vas])\[(\d+):(\d+)\]$')

def parse_operand(tok):
    tok = tok.strip()
    m = RNG_RE.match(tok)
    if m:
        return [(m.group(2), i) for i in range(int(m.group(3)), int(m.group(4)) + 1)]
    m = REG_RE.match(tok)
    if m:
        return [(m.group(2), int(m.group(3)))]
    if tok in ('vcc', 'exec', 'm0', 'scc'):
        return [(tok, 0)]
    if tok in ('vcc_lo', 'vcc_hi'):
        return [('vcc', 0)]
    if tok in ('exec_lo', 'exec_hi'):
        return [('exec', 0)]
    return []

TRANS = ('v_exp_f32', 'v_log_f32', 'v_rcp_f32', 'v_rsq_f32', 'v_sqrt_f32', 'v_sin_f32', 'v_cos_f32')
SCC_WRITERS = ('s_add_u32', 's_addc_u32', 's_sub_u32', 's_subb_u32', 's_add_i32', 's_sub_i32', 's_and_b32', 's_and_b64', 's_or_b32',
               's_or_b64', 's_xor_b32', 's_xor_b64', 's_lshl_b32', 's_lshr_b32', 's_lshl_b64', 's_andn2_b64', 's_andn2_b32', 's_min_u32', 's_max_u32',
               's_bfe_u32', 's_ashr_i32', 's_not_b32')

class I:
    __slots__ = ('text', 'op', 'kind', 'rd', 'wr', 'tag', 'srcc', 'srcab', 'wide', 'dpp', 'meta')
    def __init__(self, text, tag=None, meta=None):
        self.text = text
        self.tag = tag
        self.meta = meta
        self.srcc = set(); self.srcab = set(); self.wide = False; self.dpp = False
        t = text.split(';')[0].strip()
        if t.endswith(':'):
            self.op = 'label'; self.kind = 'label'; self.rd = set(); self.wr = set(); return
        if t.startswith('@'):
            self.op = t; self.kind = 'pseudo'; self.rd = set(); self.wr = set(); return
        parts = t.split(None, 1)
        op = parts[0]; self.op = op
        rest = parts[1] if len(parts) > 1 else ''
        ops = []; cur = ''; depth = 0
        for ch in rest:
            if ch in '[(': depth += 1
            if ch in '])': depth -= 1
            if ch == ',' and depth == 0:
                ops.append(cur); cur = ''
            else:
                cur += ch
        if cur.strip(): ops.append(cur)
        mods = ''
        if ops:
            last = ops[-1].strip().split(None, 1)
            ops[-1] = last[0]
            mods = last[1] if len(last) > 1 else ''
        regs = [parse_operand(o) for o in ops]
        flat = lambda L: set(r for x in L for r in x)
        rd = set(); wr = set()
        if op.startswith('v_mfma'):
            self.kind = 'mfma'; wr = flat(regs[:1]); rd = flat(regs[1:]); self.srcc = flat(regs[3:4]); self.srcab = flat(regs[1:3])
        elif op.startswith('buffer_load') or op.startswith('global_load'):
            self.kind = 'vld'
            if ' lds' in (' ' + mods) or op.startswith('global_load_lds'):
                rd = flat(regs) | {('m0', 0)}
            else:
                wr = flat(regs[:1]); rd = flat(regs[1:])
        elif op.startswith('buffer_store') or op.startswith('global_store') or op.startswith('global_atomic') or op.startswith('buffer_atomic'):
            self.kind = 'vst'; rd = flat(regs)
            self.wide = op.endswith('x4') or op.endswith('x3')
            if self.wide:
                self.srcc = flat(regs[:1]) if op.startswith('buffer') else flat(regs[1:2])
        elif op.startswith('ds_read') or op.startswith('ds_bpermute') or op.startswith('ds_swizzle'):
            self.kind = 'dsr'; wr = flat(regs[:1]); rd = flat(regs[1:])
        elif op.startswith('ds_write'):
            self.kind = 'dsw'; rd = flat(regs)
            self.wide = op.endswith('b128') or op.endswith('b96')
            if self.wide: self.srcc = flat(regs[1:2])
        elif op.startswith('s_load') or op.startswith('s_memtime') or op.startswith('s_memrealtime'):
            self.kind = 'smem'; wr = flat(regs[:1]); rd = flat(regs[1:])
        elif op == 's_waitcnt':
            self.kind = 'wait'
        elif op == 's_nop':
            self.kind = 'nop'
        elif op == 's_barrier':
            self.kind = 'barrier'
        elif op.startswith('s_cbranch') or op == 's_branch' or op == 's_endpgm':
            self.kind = 'branch'
            if 'scc' in op: rd = {('scc', 0)}
            if 'vcc' in op: rd = {('vcc', 0)}
            if 'exec' in op: rd = {('exec', 0)}
        elif op.startswith('s_cmp') or op.startswith('s_bitcmp'):
            self.kind = 'salu'; rd = flat(regs); wr = {('scc', 0)}
        elif op in ('s_sleep', 's_setprio'):
            self.kind = 'salu'
        elif op.startswith('s_'):
            self.kind = 'salu'; wr = flat(regs[:1]); rd = flat(regs[1:])
            if op in SCC_WRITERS or 'saveexec' in op: wr |= {('scc', 0)}
            if 'saveexec' in op: wr |= {('exec', 0)}; rd |= {('exec', 0)}
            if op.startswith('s_cselect') or op in ('s_addc_u32', 's_subb_u32'): rd |= {('scc', 0)}
        elif op.startswith('v_'):
            base = op.replace('_e32', '').replace('_e64', '').replace('_dpp', '')
            self.kind = 'trans' if base in TRANS else 'valu'
            if 'permlane' in op and 'swap' in op:
                wr = flat(regs); rd = flat(regs)
            elif base in ('v_add_co_u32', 'v_sub_co_u32', 'v_addc_co_u32'):
                wr = flat(regs[:2]); rd = flat(regs[2:])
            else:
                wr = flat(regs[:1]); rd = flat(regs[1:])
                if base in ('v_fmac_f32', 'v_dot2c_f32_bf16', 'v_pk_fmac_f16'): rd |= wr
            if op.endswith('_dpp') or 'quad_perm' in mods or 'row_' in mods:
                self.dpp = True; rd |= wr
        else:
            raise ValueError('unknown op: ' + text)
        self.rd = rd; self.wr = wr

    def states(self):
        if self.kind in ('label', 'pseudo'): return 0
        if self.kind == 'nop': return int(self.text.split()[1]) + 1
        return 1

def is_valu(i): return i.kind in ('valu', 'trans')
def isv(r): return r[0] in ('v', 'a')

def required_gap(p, c):
    g = 0
    if is_valu(p):
        vw = {r for r in p.wr if isv(r)}
        sw = {r for r in p.wr if r[0] in ('s', 'vcc')}
        if c.kind == 'mfma' and vw & c.rd: g = max(g, 2)
        if is_valu(c):
            if c.dpp and vw & c.rd: g = max(g, 2)
            if 'permlane' in c.op and vw & c.rd: g = max(g, 2)
            if c.op.startswith('v_readfirstlane') or c.op.startswith('v_readlane'):
                if vw & c.rd: g = max(g, 1)
                if sw & c.rd: g = max(g, 4)
            if sw & c.rd: g = max(g, 2)
            if p.kind == 'trans' and c.kind != 'trans' and vw & c.rd: g = max(g, 1)
        if c.kind in ('vld', 'vst') and sw & c.rd: g = max(g, 5)
        if c.kind in ('salu', 'branch', 'smem') and sw & c.rd: g = max(g, 1)
        if ('exec', 0) in p.wr: g = max(g, 5)
    if p.kind == 'mfma':
        n8 = '32x32' in p.op
        far = 12 if n8 else 8
        if c.kind == 'mfma':
            if p.wr & c.srcab: g = max(g, far)
            if p.wr & c.srcc and p.wr != c.srcc: g = max(g, 10 if n8 else 6)
            if p.wr & c.wr and not (p.wr & c.srcc): g = max(g, far)
        elif is_valu(c):
            if p.wr & (c.rd | c.wr): g = max(g, far)
            if p.srcc & c.wr: g = max(g, 7 if n8 else 3)
        elif c.kind in ('vld', 'vst', 'dsr', 'dsw'):
            if p.wr & (c.rd | c.wr): g = max(g, far)
    if p.kind in ('vst', 'dsw') and p.wide:
        if p.srcc & c.wr: g = max(g, 2)
    if p.kind == 'salu' and ('m0', 0) in p.wr and ('m0', 0) in c.rd: g = max(g, 1)
    return g

class Prog:
    def __init__(self):
        self.ins = []
    def e(self, text, tag=None, meta=None):
        for line in text.strip().split('\n'):
            line = line.strip()
            if line and not line.startswith(';'):
                self.ins.append(I(line, tag, meta))
    def extend(self, other):
        self.ins.extend(other.ins if isinstance(other, Prog) else other)

def parse_wait(text):
    vm = re.search(r'vmcnt\((\d+)\)', text); lg = re.search(r'lgkmcnt\((\d+)\)', text)
    return (int(vm.group(1)) if vm else None, int(lg.group(1)) if lg else None)

def insert_waits(ins):
    out = []
    vm = []
    lg = []
    def need(lst, pred):
        idx = -1
        for k, o in enumerate(lst):
            if pred(o): idx = k
        return None if idx < 0 else len(lst) - 1 - idx
    for i in ins:
        nv = nl = None
        if i.kind == 'pseudo':
            a = i.op.split()
            if a[0] == '@wait_tag':
                nv = need(vm, lambda o: o.tag == a[1])
            elif a[0] == '@wait_lds':
                nl = 0 if lg else None
            elif a[0] == '@wait_vm':
                nv = 0 if vm else None
            else:
                out.append(i); continue
        elif i.kind == 'wait':
            v, l = parse_wait(i.text)
            if v is not None: vm = vm[len(vm) - v:] if v < len(vm) else vm
            if v == 0: vm = []
            if l is not None: lg = lg[len(lg) - l:] if l < len(lg) else lg
            if l == 0: lg = []
            out.append(i); continue
        else:
            touched = i.rd | i.wr
            nv = need(vm, lambda o: o.wr & touched)
            nl = need(lg, lambda o: o.wr & touched)
            if nl is not None and any(o.kind == 'smem' for o in lg): nl = 0
        if nv is not None or nl is not None:
            s = 's_waitcnt'
            if nv is not None:
                nv = min(nv, 63); s += f' vmcnt({nv})'; vm = vm[len(vm) - nv:] if nv else []
            if nl is not None:
                nl = min(nl, 15); s += f' lgkmcnt({nl})'; lg = lg[len(lg) - nl:] if nl else []
            out.append(I(s))
        if i.kind == 'pseudo': continue
        out.append(i)
        if i.kind in ('vld', 'vst'): vm.append(i)
        if i.kind in ('dsr', 'dsw', 'smem'): lg.append(i)
    return out

def insert_nops(ins):
    out = []
    for i in ins:
        if i.kind in ('label', 'pseudo'):
            out.append(i); continue
        dist = 0; need = 0
        for p in reversed(out):
            if dist >= 14: break
            g = required_gap(p, i)
            if g > dist: need = max(need, g - dist)
            dist += p.states()
        if need:
            out.append(I(f's_nop {need - 1}'))
        out.append(i)
    return out

def render(ins):
    L = []
    for i in ins:
        if i.kind == 'pseudo': continue
        L.append(i.text if i.kind == 'label' else '  ' + i.text)
    return '\n'.join(L)

def finalize(prog):
    return render(insert_nops(insert_waits(prog.ins)))

def magic(div, maxval):
    for sh in range(1, 25):
        mul = -(-(1 << sh) // div)
        if mul >= (1 << 24) or maxval * mul >= (1 << 32): continue
        if all((x * mul) >> sh == x // div for x in range(maxval + 1)): return mul, sh
    raise ValueError
```

```python
S, D, F, H, DH = 2048, 640, 1536, 32, 20
NFRAG = 270
FB_K, FB_V, FB_Q, FB_WO, FB_W1, FB_W2, FB_W3, FB_W4 = 0, 25, 50, 75, 100, 125, 150, 210
WS_W = 0x0000000
WS_CSUM = 0x0900000
CS_K, CS_V, CS_Q, CS_W1, CS_W3 = 0, 80, 160, 240, 320
WS_WPHI = 0x0910000
WS_FLAG = 0x0920000
FL_X = 0
FL_KV1 = 12 * 32 * 128
FL_KV2 = FL_KV1 + 2 * 32 * 128
FLAG_BYTES = 65536
PH_O, PH_X2, PH_H, PH_X1, PH_H3, PH_X = 0, 1, 2, 3, 4, 5
WS_STAT = 0x0940000
STAT_SZ = 0x20000
WS_KVF = 0x0A00000
WS_KVP = 0x0A80000
KVP_LAYER = 32 * 32 * 3840
ACT = 0x280000
WS_ACT = 0x1400000
LAYER_ACT = 5 * ACT + 0x600000
def act(layer, name):
    o = {'X': 0, 'O': ACT, 'X2': 2 * ACT, 'H': 3 * ACT, 'X1': 4 * ACT, 'H3': 5 * ACT}[name]
    return WS_ACT + layer * LAYER_ACT + o
def stat(layer, k): return WS_STAT + (layer * 3 + k) * STAT_SZ
WS_SIZE = 0x10000000
assert WS_KVP + 2 * KVP_LAYER <= WS_ACT
assert 8 * 4 * NFRAG * 1024 <= WS_CSUM
KA_X, KA_WQKV, KA_WPHI, KA_WO, KA_BX, KA_W1, KA_W2, KA_W3, KA_W4, KA_OUT, KA_DBG, KA_WS = [8 * i for i in range(12)]
```

```python
import struct
from asmgen import *
from layout import *
from prep import stats_reduce, srd

def f32(x): return '0x%08x' % struct.unpack('<I', struct.pack('<f', x))[0]

L_RED, L_KT = 0, 61440
L_WPHI = L_KT + 36864
L_CSUM = L_WPHI + 3840
L_STAT = L_CSUM + 2048
L_KVF = L_STAT + 2048
L_ZERO = L_KVF + 8192
MAIN_LDS = L_ZERO + 2048
vL16, vL8, vW = 1, 2, 3
vRW = [4, 5, 6]; vRR = 7
vBDW, vBDK, vKTW, vKTR, vCS80, vCS192, vSTW, vSTR = 8, 9, 10, 11, 12, 13, 14, 15
vH16 = [16, 18, 20, 22]; vH8 = [17, 19, 21, 23]
vLane0, vOne, vSTG = 24, 25, 26
vT = 27
vMean, vR = 28, 30
vA = 32
vS = [128, 148, 168, 188]
vR0, vR1 = 208, 228
vX = 248
sWS, sOUT = 4, 8
sRB, sCS, sWV = 12, 13, 14
sT = [16, 17, 18, 19]; sT3 = [20, 21, 22, 23]
sOWN, sOWN3, sSTL, sSTS = 24, 25, 26, 27
sFX, sFH, sHM, sFK = 28, 30, 32, 34
sFXS, sFKS = 36, 37
sONES = 38
sTO, sWO, sTMP, sTMP2 = 40, 41, 42, 43
sP = 44
sKVPS, sKVPL, sKVFS, sKVFL = 52, 53, 54, 55
sLOG2E, sC1, sC2, sHW = 56, 58, 59, 60
sSTAMP = 64
POOL = 64
PACE = 80
EPS = 1e-5

class Gen:
    def __init__(self, stamps=False):
        self.p = Prog()
        self.nlab = 0
        self.stamps = stamps
        self.nstamp = 0
    def e(self, *a, **k): self.p.e(*a, **k)
    def lab(self, s):
        self.nlab += 1
        return f'L_{s}_{self.nlab}'

    def stamp(self, name):
        if not self.stamps: return
        self.e('@nopf_on')
        self.e(f's_memtime s[{sSTAMP}:{sSTAMP + 1}]')
        self.e('s_waitcnt lgkmcnt(0)')
        self.e(f'v_mov_b32 v{vT}, s{sSTAMP}')
        self.e(f'buffer_store_dword v{vT}, v{vLane0}, s[{sWS}:{sWS + 3}], s{sSTAMP + 2} offen offset:{4 * self.nstamp}')
        self.e('@nopf_off')
        self.stamp_names.append(name)
        self.nstamp += 1
    stamp_names = []

    def poll(self, base, off, ndw, mask=None, est=600):
        L = self.lab('poll'); Dn = self.lab('pdone')
        self.e('@nopf_on')
        self.e(f'{L}:')
        self.e(f's_load_dwordx{ndw} s[{sP}:{sP + ndw - 1}], s[{base}:{base + 1}], {off} glc')
        self.e('s_waitcnt lgkmcnt(0)')
        if ndw == 8:
            self.e(f's_and_b64 s[{sP}:{sP + 1}], s[{sP}:{sP + 1}], s[{sP + 2}:{sP + 3}]')
            self.e(f's_and_b64 s[{sP + 4}:{sP + 5}], s[{sP + 4}:{sP + 5}], s[{sP + 6}:{sP + 7}]')
            self.e(f's_and_b64 s[{sP}:{sP + 1}], s[{sP}:{sP + 1}], s[{sP + 4}:{sP + 5}]')
        if mask is not None:
            self.e(f's_and_b64 s[{sP}:{sP + 1}], s[{sP}:{sP + 1}], s[{mask}:{mask + 1}]')
            self.e(f's_cmp_eq_u64 s[{sP}:{sP + 1}], s[{mask}:{mask + 1}]')
        else:
            self.e(f's_cmp_eq_u64 s[{sP}:{sP + 1}], s[{sONES}:{sONES + 1}]')
        self.e(f's_cbranch_scc1 {Dn}')
        self.e(f's_sub_u32 s{sTO}, s{sTO}, 1')
        self.e(f's_cbranch_scc0 {L}')
        self.e(f's_mov_b32 s{sTO}, 0')
        self.e(f'{Dn}:')
        self.e(f'@time {est}')
        self.e('@nopf_off')

    def signal(self, tag, soff, const):
        self.e(f's_add_u32 s{sTMP}, s{soff}, {const}')
        self.e(f'@wait_tag {tag}')
        self.e(f'buffer_store_byte v{vOne}, v{vLane0}, s[{sWS}:{sWS + 3}], s{sTMP} offen sc1')

    def a_loads(self, ps, base, halo=False):
        A = vA + 20 * ps
        t = sTMP2
        out = []
        if halo:
            out.append(f's_add_u32 s{t}, s{sHW}, {base}')
            v16, v8 = vH16[ps], vH8[ps]
        else:
            out.append(f's_add_u32 s{t}, s{sT[ps]}, {base}')
            v16, v8 = vL16, vL8
        W = f's[{sWS}:{sWS + 3}], s{t} offen'
        out[0] += '\n' + f'buffer_load_dwordx4 v[{A}:{A + 3}], v{v16}, {W} sc1'
        out.append(f'buffer_load_dwordx4 v[{A + 4}:{A + 7}], v{v16}, {W} offset:1024 sc1')
        out.append(f'buffer_load_dwordx2 v[{A + 8}:{A + 9}], v{v8}, {W} sc1')
        out.append(f'buffer_load_dwordx2 v[{A + 10}:{A + 11}], v{v8}, {W} offset:2560 sc1')
        out.append(f'buffer_load_dwordx4 v[{A + 12}:{A + 15}], v{v16}, {W} offset:2560 sc1')
        out.append(f'buffer_load_dwordx4 v[{A + 16}:{A + 19}], v{v16}, {W} offset:3584 sc1')
        return out

    def a3_loads(self, grp, base):
        half, ps = grp >> 2, grp & 3
        A = vA + 24 * (grp & 3)
        t = sTMP2
        out = []
        for k in range(6):
            pre = ''
            if k == 0: pre = f's_add_u32 s{t}, s{sT3[ps]}, {base + half * 6144}\n'
            if k == 4: pre = f's_add_u32 s{t}, s{sT3[ps]}, {base + half * 6144 + 4096}\n'
            out.append(pre + f'buffer_load_dwordx4 v[{A + 4 * k}:{A + 4 * k + 3}], v{vL16}, s[{sWS}:{sWS + 3}], s{t} offen offset:{1024 * (k & 3)} sc1')
        return out

    def stat_loads(self, base):
        return [f's_add_u32 s{sTMP}, s{sSTL}, {base - 2048}\n'
                f'buffer_load_dwordx2 v[{vX}:{vX + 1}], v{vL8}, s[{sWS}:{sWS + 3}], s{sTMP} offen sc1',
                f'buffer_load_dwordx2 v[{vX + 2}:{vX + 3}], v{vL8}, s[{sWS}:{sWS + 3}], s{sTMP} offen offset:512 sc1']
    def stat_to_lds(self):
        return [f'v_add_f32 v{vX}, v{vX}, v{vX + 2}\nv_add_f32 v{vX + 1}, v{vX + 1}, v{vX + 3}',
                f'ds_write_b64 v{vSTW}, v[{vX}:{vX + 1}]']
    def stat_reads(self):
        return [f'ds_read_b64 v[{vX + 2 * k}:{vX + 2 * k + 1}], v{vSTR} offset:{512 * k}' for k in range(4)]
    def stat_finish(self):
        return [f'v_add_f32 v{vX}, v{vX}, v{vX + 2}', f'v_add_f32 v{vX + 1}, v{vX + 1}, v{vX + 3}',
                f'v_add_f32 v{vX + 4}, v{vX + 4}, v{vX + 6}', f'v_add_f32 v{vX + 5}, v{vX + 5}, v{vX + 7}',
                f'v_add_f32 v{vX}, v{vX}, v{vX + 4}', f'v_add_f32 v{vX + 1}, v{vX + 1}, v{vX + 5}',
                f'v_mul_f32 v{vMean}, {f32(1 / 640)}, v{vX}', f'v_mul_f32 v{vX + 1}, {f32(1 / 640)}, v{vX + 1}',
                f'v_fma_f32 v{vMean + 1}, -v{vMean}, v{vMean}, v{vX + 1}', f'v_max_f32 v{vMean + 1}, 0, v{vMean + 1}',
                f'v_add_f32 v{vR + 1}, {f32(EPS)}, v{vMean + 1}', f'v_rsq_f32 v{vR}, v{vR + 1}']

    def chunk(self, frag0, nt, ks, areg, cinit=None, side=None, first=True, last=True, warbar=True, extra_after_bar=None):
        side = {k: list(v) for k, v in (side or {}).items()}
        per = ks * nt
        def add(pos, ins): side.setdefault(pos, []).append(ins)
        if last:
            for ps in range(3):
                at = (ps + 1) * per + 3
                if ps == 0 and warbar: add(at, 's_barrier')
                for j in range(nt):
                    add(at + j, f'ds_write_b128 v{vRW[ps]}, v[{vS[ps] + 4 * j}:{vS[ps] + 4 * j + 3}] offset:{1024 * j}')
            at = 3 * per + 3 + nt + 2
            add(at, '@wait_lds'); add(at, 's_barrier')
            for q in range(3):
                for j in range(nt):
                    add(at, f'ds_read_b128 v[{vS[q] + 4 * j}:{vS[q] + 4 * j + 3}], v{vRR} offset:{5120 * q + 1024 * j}')
            for x in (extra_after_bar or []): add(at, x)
        n = 0
        for ps in range(4):
            for s in range(ks):
                for j in range(nt):
                    d = vS[ps] + 4 * j
                    if s == 0 and first:
                        c = f'v[{cinit + 4 * j}:{cinit + 4 * j + 3}]' if (ps == 3 and cinit is not None) else '0'
                    else:
                        c = f'v[{d}:{d + 3}]'
                    g = frag0 + s * nt + j
                    sl = 4 * (g % POOL)
                    a = areg(ps, s)
                    self.e(f'v_mfma_f32_16x16x32_bf16 v[{d}:{d + 3}], a[{sl}:{sl + 3}], v[{a}:{a + 3}], {c}', meta=('W', g))
                    for x in side.pop(n, []): self.e(x)
                    n += 1
        for k in sorted(side):
            for x in side[k]: self.e(x)
        if last:
            for k in range(0, 4 * nt, 2):
                self.e(f'v_pk_add_f32 v[{vS[0] + k}:{vS[0] + k + 1}], v[{vS[0] + k}:{vS[0] + k + 1}], v[{vS[1] + k}:{vS[1] + k + 1}]')
            for k in range(0, 4 * nt, 2):
                self.e(f'v_pk_add_f32 v[{vS[2] + k}:{vS[2] + k + 1}], v[{vS[2] + k}:{vS[2] + k + 1}], v[{vS[3] + k}:{vS[3] + k + 1}]')
            for k in range(0, 4 * nt, 2):
                self.e(f'v_pk_add_f32 v[{vS[3] + k}:{vS[3] + k + 1}], v[{vS[0] + k}:{vS[0] + k + 1}], v[{vS[2] + k}:{vS[2] + k + 1}]')

    def first_chunk_side(self, base, halo=False, statbase=None, per=25):
        self.e('@nopf_on')
        for x in self.a_loads(0, base, halo): self.e(x)
        if statbase is not None:
            for x in self.stat_loads(statbase): self.e(x)
        for x in self.a_loads(1, base, halo): self.e(x)
        side = {}
        step = per // 6
        for ps in (2, 3):
            for k, x in enumerate(self.a_loads(ps, base, halo)):
                side.setdefault((ps - 2) * per + k * step, []).append(x)
        side.setdefault(2 * per - 1, []).append('@nopf_off')
        if statbase is not None:
            for k, x in enumerate(self.stat_to_lds()):
                side.setdefault(per + 10 + k, []).append(x)
        return side

    def cs_reads(self, dst, vaddr, off, n4):
        return [f'ds_read_b128 v[{dst + 4 * k}:{dst + 4 * k + 3}], v{vaddr} offset:{off + 16 * k}' for k in range(n4)]

    def center(self, acc, cs, n):
        for k in range(0, n, 2):
            self.e(f'v_pk_fma_f32 v[{acc + k}:{acc + k + 1}], v[{cs + k}:{cs + k + 1}], v[{vMean}:{vMean + 1}], v[{acc + k}:{acc + k + 1}] op_sel_hi:[1,0,1] neg_lo:[0,1,0] neg_hi:[0,1,0]')
    def scale(self, dst, src, sc, n):
        for k in range(0, n, 2):
            self.e(f'v_pk_mul_f32 v[{dst + k}:{dst + k + 1}], v[{src + k}:{src + k + 1}], v[{sc}:{sc + 1}] op_sel_hi:[1,0]')
    def pack(self, dst, src, n):
        for k in range(0, n, 2):
            self.e(f'v_cvt_pk_bf16_f32 v{dst + k // 2}, v{src + k}, v{src + k + 1}')

    def gelu(self, t, tmp, n, c1, c2, ir):
        for k in range(0, n, 2):
            T = f'v[{t + k}:{t + k + 1}]'; U = f'v[{tmp + k}:{tmp + k + 1}]'
            self.e(f'v_pk_mul_f32 {U}, {T}, {T}')
            self.e(f'v_pk_fma_f32 {U}, {U}, v[{c2}:{c2 + 1}], v[{c1}:{c1 + 1}] op_sel_hi:[1,0,0]')
            self.e(f'v_pk_mul_f32 {U}, {U}, {T}')
        for k in range(n): self.e(f'v_exp_f32 v{tmp + k}, v{tmp + k}')
        for k in range(0, n, 2):
            U = f'v[{tmp + k}:{tmp + k + 1}]'
            self.e(f'v_pk_fma_f32 {U}, {U}, v[{ir}:{ir + 1}], v[{ir}:{ir + 1}] op_sel_hi:[1,0,0]')
        for k in range(n): self.e(f'v_rcp_f32 v{tmp + k}, v{tmp + k}')
        for k in range(0, n, 2):
            T = f'v[{t + k}:{t + k + 1}]'; U = f'v[{tmp + k}:{tmp + k + 1}]'
            self.e(f'v_pk_mul_f32 {T}, {T}, {U}')

    def gelu_consts(self, r, ir_src=None):
        self.e(f'v_mul_f32 v{vX}, s{sC1}, v{r}')
        self.e(f'v_mul_f32 v{vX + 2}, v{r}, v{r}')
        self.e(f'v_mul_f32 v{vX + 2}, v{vX + 2}, v{r}')
        self.e(f'v_mul_f32 v{vX + 2}, s{sC2}, v{vX + 2}')
        self.e(f'v_rcp_f32 v{vX + 4}, v{r}')

    def store_x(self, pk, base, tag):
        self.e(f's_add_u32 s{sTMP}, s{sOWN}, {base}')
        W = f's[{sWS}:{sWS + 3}], s{sTMP} offen'
        self.e(f'buffer_store_dwordx4 v[{pk}:{pk + 3}], v{vL16}, {W} sc1', tag=tag)
        self.e(f'buffer_store_dwordx4 v[{pk + 4}:{pk + 7}], v{vL16}, {W} offset:1024 sc1', tag=tag)
        self.e(f'buffer_store_dwordx2 v[{pk + 8}:{pk + 9}], v{vL8}, {W} sc1', tag=tag)

    def store_stats(self, x, base, tag):
        a, b = vX, vX + 2
        self.e(f'v_pk_add_f32 v[{a}:{a + 1}], v[{x}:{x + 1}], v[{x + 2}:{x + 3}]')
        self.e(f'v_pk_mul_f32 v[{b}:{b + 1}], v[{x}:{x + 1}], v[{x}:{x + 1}]')
        self.e(f'v_pk_fma_f32 v[{b}:{b + 1}], v[{x + 2}:{x + 3}], v[{x + 2}:{x + 3}], v[{b}:{b + 1}]')
        for k in range(4, 20, 2):
            self.e(f'v_pk_add_f32 v[{a}:{a + 1}], v[{a}:{a + 1}], v[{x + k}:{x + k + 1}]')
            self.e(f'v_pk_fma_f32 v[{b}:{b + 1}], v[{x + k}:{x + k + 1}], v[{x + k}:{x + k + 1}], v[{b}:{b + 1}]')
        self.e(f'v_add_f32 v{a}, v{a}, v{a + 1}')
        self.e(f'v_add_f32 v{b}, v{b}, v{b + 1}')
        stats_reduce(self.p, a, b, a + 1)
        self.e(f's_add_u32 s{sTMP}, s{sSTS}, {base}')
        self.e(f'buffer_store_dword v{a}, v{vSTG}, s[{sWS}:{sWS + 3}], s{sTMP} offen sc1', tag=tag)

    def phi(self, out):
        kb = vS[0]
        fr = vS[0] + 12
        P = vS[2]
        self.pack(kb, vS[3], 20)
        self.e(f'v_mov_b32 v{kb + 10}, 0'); self.e(f'v_mov_b32 v{kb + 11}, 0')
        nb = 7
        order = [(jf, sd) for sd in range(3) for jf in range(5)]
        def rd(i):
            jf, sd = order[i]; b = fr + 4 * (i % nb)
            self.e(f'ds_read_b128 v[{b}:{b + 3}], v{vBDW} offset:{192 * jf + 16 * sd}')
        for i in range(nb): rd(i)
        for i, (jf, sd) in enumerate(order):
            b = fr + 4 * (i % nb); d = P + 4 * jf
            c = '0' if sd == 0 else f'v[{d}:{d + 3}]'
            self.e(f'v_mfma_f32_16x16x32_bf16 v[{d}:{d + 3}], v[{b}:{b + 3}], v[{kb + 4 * sd}:{kb + 4 * sd + 3}], {c}')
            if i + nb < 15: rd(i + nb)
        mx, mn = vX, vX + 2
        self.e(f'v_max3_f32 v{mx}, v{P}, v{P + 1}, v{P + 2}')
        self.e(f'v_min3_f32 v{mn}, v{P}, v{P + 1}, v{P + 2}')
        for k in range(3, 19, 2):
            self.e(f'v_max3_f32 v{mx}, v{mx}, v{P + k}, v{P + k + 1}')
            self.e(f'v_min3_f32 v{mn}, v{mn}, v{P + k}, v{P + k + 1}')
        self.e(f'v_max_f32 v{mx}, v{mx}, v{P + 19}')
        self.e(f'v_min_f32 v{mn}, v{mn}, v{P + 19}')
        self.e(f'v_mul_f32 v{mx}, s{sLOG2E}, v{mx}')
        self.e(f'v_mul_f32 v{mn}, s{sLOG2E}, v{mn}')
        E = vS[3]
        for k in range(0, 20, 2):
            self.e(f'v_pk_fma_f32 v[{E + k}:{E + k + 1}], v[{P + k}:{P + k + 1}], s[{sLOG2E}:{sLOG2E + 1}], v[{mx}:{mx + 1}] op_sel_hi:[1,0,0] neg_lo:[0,0,1] neg_hi:[0,0,1]')
            self.e(f'v_pk_fma_f32 v[{P + k}:{P + k + 1}], v[{P + k}:{P + k + 1}], s[{sLOG2E}:{sLOG2E + 1}], v[{mn}:{mn + 1}] op_sel_hi:[1,0,0] neg_lo:[1,0,0] neg_hi:[1,0,0]')
        for k in range(20): self.e(f'v_exp_f32 v{E + k}, v{E + k}')
        for k in range(20): self.e(f'v_exp_f32 v{P + k}, v{P + k}')
        for (B, s_) in ((E, mx), (P, mn)):
            self.e(f'v_pk_add_f32 v[{s_}:{s_ + 1}], v[{B}:{B + 1}], v[{B + 2}:{B + 3}]')
            for k in range(4, 20, 2):
                self.e(f'v_pk_add_f32 v[{s_}:{s_ + 1}], v[{s_}:{s_ + 1}], v[{B + k}:{B + k + 1}]')
            self.e(f'v_add_f32 v{s_}, v{s_}, v{s_ + 1}')
            self.e(f'v_rcp_f32 v{s_}, v{s_}')
        self.scale(E, E, mx, 20); self.scale(P, P, mn, 20)
        self.pack(out, E, 20); self.pack(out + 10, P, 20)

    def prologue(self):
        e = self.e
        e('s_cmp_ge_u32 s2, 256')
        e('s_cbranch_scc1 L_main_exit')
        e(f's_load_dwordx2 s[{sOUT}:{sOUT + 1}], s[0:1], {KA_OUT}')
        e(f's_load_dwordx2 s[{sWS}:{sWS + 1}], s[0:1], {KA_WS}')
        e('v_lshrrev_b32 v32, 6, v0')
        e(f'v_readfirstlane_b32 s{sWV}, v32')
        e('v_and_b32 v0, 63, v0')
        e(f's_lshr_b32 s{sTMP}, s2, 3')
        e(f's_and_b32 s{sCS}, s{sTMP}, 7')
        e(f's_lshr_b32 s{sTMP}, s{sTMP}, 3')
        e(f's_and_b32 s{sRB}, s2, 7')
        e(f's_lshl_b32 s{sRB}, s{sRB}, 2')
        e(f's_add_u32 s{sRB}, s{sRB}, s{sTMP}')
        e(f'v_lshlrev_b32 v{vL16}, 4, v0')
        e(f'v_lshlrev_b32 v{vL8}, 3, v0')
        e(f'v_add_u32 v{vL8}, 2048, v{vL8}')
        e(f's_lshl_b32 s15, s{sCS}, 2')
        e(f's_add_u32 s15, s15, s{sWV}')
        e(f's_mul_i32 s{sTMP}, s15, {NFRAG * 1024}')
        e(f'v_add_u32 v{vW}, s{sTMP}, v{vL16}')
        for ps in range(4):
            e(f's_add_u32 s{sTMP}, s{sWV}, {ps + 1}')
            e(f's_and_b32 s{sTMP}, s{sTMP}, 3')
            if ps < 3:
                e(f's_mul_i32 s{sTMP2}, s{sTMP}, 15360')
                e(f's_add_u32 s{sTMP2}, s{sTMP2}, {L_RED + 5120 * ps}')
                e(f'v_add_u32 v{vRW[ps]}, s{sTMP2}, v{vL16}')
            e(f's_lshl_b32 s{sTMP2}, s{sRB}, 2')
            e(f's_add_u32 s{sTMP}, s{sTMP}, s{sTMP2}')
            e(f's_lshl_b32 s{sP + ps}, s{sTMP}, 4')
            e(f's_mul_i32 s{sT[ps]}, s{sTMP}, 20480')
            e(f's_mul_i32 s{sTMP2}, s{sWV}, 5120')
            e(f's_add_u32 s{sT[ps]}, s{sT[ps]}, s{sTMP2}')
            e(f's_mul_i32 s{sT3[ps]}, s{sTMP}, 49152')
            e(f's_mul_i32 s{sTMP2}, s{sWV}, 12288')
            e(f's_add_u32 s{sT3[ps]}, s{sT3[ps]}, s{sTMP2}')
        e(f's_mul_i32 s{sHW}, s{sWV}, 5120')
        e('s_waitcnt lgkmcnt(0)')
        e(f's_and_b32 s{sWS + 1}, s{sWS + 1}, 0xffff')
        e(f's_mov_b32 s{sWS + 2}, {WS_SIZE}')
        e(f's_mov_b32 s{sWS + 3}, 0x00020000')
        e(f's_and_b32 s{sOUT + 1}, s{sOUT + 1}, 0xffff')
        e(f's_mov_b32 s{sOUT + 2}, {S * D * 2}')
        e(f's_mov_b32 s{sOUT + 3}, 0x00020000')
        e(f's_lshl_b32 s{sTMP}, s{sRB}, 2')
        e(f's_add_u32 s{sTMP}, s{sTMP}, s{sWV}')
        e(f's_lshl_b32 s{sTMP}, s{sTMP}, 3')
        e(f's_add_u32 s{sTMP}, s{sTMP}, s{sCS}')
        e(f's_mul_i32 s{sOWN}, s{sTMP}, 2560')
        e(f's_mul_i32 s{sOWN3}, s{sTMP}, 6144')
        e(f's_lshl_b32 s{sTMP}, s{sRB}, 12')
        e(f's_lshl_b32 s{sTMP2}, s{sWV}, 10')
        e(f's_add_u32 s{sSTL}, s{sTMP}, s{sTMP2}')
        e(f's_lshl_b32 s{sTMP2}, s{sCS}, 9')
        e(f's_add_u32 s{sSTS}, s{sTMP}, s{sTMP2}')
        e(f's_lshl_b32 s{sTMP2}, s{sWV}, 7')
        e(f's_add_u32 s{sSTS}, s{sSTS}, s{sTMP2}')
        e('@entry_loads')
        e(f's_mul_i32 s{sTMP}, s15, 960')
        e(f's_add_u32 s{sTMP}, s{sTMP}, {WS_WPHI}')
        e(f'buffer_load_dwordx4 v[{vS[0]}:{vS[0] + 3}], v{vL16}, s[{sWS}:{sWS + 3}], s{sTMP} offen')
        e(f's_lshl_b32 s{sTMP}, s15, 9')
        e(f's_add_u32 s{sTMP}, s{sTMP}, {WS_CSUM - 2048}')
        e(f'buffer_load_dwordx2 v[{vS[0] + 4}:{vS[0] + 5}], v{vL8}, s[{sWS}:{sWS + 3}], s{sTMP} offen')
        e(f's_add_u32 s{sTMP}, s{sOWN}, {act(0, "X")}')
        W = f's[{sWS}:{sWS + 3}], s{sTMP} offen'
        xb = vS[1]
        e(f'buffer_load_dwordx4 v[{xb}:{xb + 3}], v{vL16}, {W}')
        e(f'buffer_load_dwordx4 v[{xb + 4}:{xb + 7}], v{vL16}, {W} offset:1024')
        e(f'buffer_load_dwordx2 v[{xb + 8}:{xb + 9}], v{vL8}, {W}')
        e(f's_lshl_b32 s{sTMP}, s{sRB}, 7')
        e(f's_lshl_b32 s{sTMP2}, s{sWV}, 3')
        e(f's_add_u32 s{sTMP2}, s{sTMP2}, s{sTMP}')
        e(f's_add_u32 s{sTMP2}, s{sTMP2}, {WS_FLAG + FL_X}')
        e(f's_add_u32 s{sFX}, s{sWS}, s{sTMP2}')
        e(f's_addc_u32 s{sFX + 1}, s{sWS + 1}, 0')
        e(f's_add_u32 s{sFXS}, s{sTMP}, s15')
        e(f's_add_u32 s{sFXS}, s{sFXS}, {WS_FLAG + FL_X}')
        e(f's_lshl_b32 s{sTMP}, s15, 7')
        e(f's_add_u32 s{sTMP}, s{sTMP}, {WS_FLAG}')
        e(f's_add_u32 s{sFK}, s{sWS}, s{sTMP}')
        e(f's_addc_u32 s{sFK + 1}, s{sWS + 1}, 0')
        e(f's_add_u32 s{sFKS}, s{sTMP}, s{sRB}')
        e(f's_mov_b32 s{sONES}, 0x01010101')
        e(f's_mov_b32 s{sONES + 1}, 0x01010101')
        e(f's_mov_b32 s{sTO}, 20000')
        e(f's_and_b32 s{sTMP}, s{sWV}, 1')
        e(f's_cmp_eq_u32 s{sTMP}, 1')
        e(f's_cselect_b32 s{sHM}, 1, 0x01000000')
        e(f's_cselect_b32 s{sTMP}, 31, 0')
        e(f's_cselect_b32 s61, 1, -1')
        e(f's_mul_i32 s{sTMP2}, s61, 128')
        e(f's_cmp_eq_u32 s{sRB}, s{sTMP}')
        e(f's_cselect_b32 s{sHM}, 0, s{sHM}')
        e(f's_cselect_b32 s{sTMP2}, 0, s{sTMP2}')
        e(f's_mov_b32 s{sHM + 1}, s{sHM}')
        e(f's_ashr_i32 s{sTMP}, s{sTMP2}, 31')
        e(f's_add_u32 s{sFH}, s{sFX}, s{sTMP2}')
        e(f's_addc_u32 s{sFH + 1}, s{sFX + 1}, s{sTMP}')
        e(f's_lshr_b32 s{sTMP}, s{sWV}, 1')
        e(f's_lshl_b32 s61, s61, s{sTMP}')
        r16, g = 33, 34
        e(f'v_and_b32 v{r16}, 15, v0')
        e(f'v_lshrrev_b32 v{g}, 4, v0')
        e('v_mov_b32 v35, 0x80000000')
        e(f's_mov_b32 s62, 20480')
        for ps in range(4):
            e(f's_add_u32 s{sTMP}, s{sP + ps}, s61')
            e(f'v_add_u32 v36, s{sTMP}, v{r16}')
            e(f'v_cmp_gt_u32 vcc, 2048, v36')
            e(f'v_lshrrev_b32 v37, 4, v36')
            e(f'v_mul_lo_u32 v37, v37, s62')
            e(f'v_and_b32 v36, 15, v36')
            e(f'v_lshl_add_u32 v36, v{g}, 4, v36')
            e(f'v_lshl_add_u32 v{vH16[ps]}, v36, 4, v37')
            e(f'v_lshl_add_u32 v{vH8[ps]}, v36, 3, v37')
            e(f'v_add_u32 v{vH8[ps]}, 2048, v{vH8[ps]}')
            e(f'v_cndmask_b32 v{vH16[ps]}, v35, v{vH16[ps]}, vcc')
            e(f'v_cndmask_b32 v{vH8[ps]}, v35, v{vH8[ps]}, vcc')
        e(f's_mul_i32 s{sTMP}, s{sWV}, 15360')
        e(f'v_add_u32 v{vRR}, s{sTMP}, v{vL16}')
        e(f'v_lshrrev_b32 v36, 2, v{r16}')
        e(f'v_cmp_eq_u32 vcc, v36, v{g}')
        e(f'v_and_b32 v36, 3, v0')
        e(f'v_mul_u32_u24 v37, 960, v{g}')
        e(f'v_mad_u32_u24 v37, v36, 48, v37')
        e(f'v_add_u32 v37, {L_WPHI}, v37')
        e(f'v_mov_b32 v38, {L_ZERO}')
        e(f'v_cndmask_b32 v{vBDW}, v38, v37, vcc')
        e(f'v_mul_u32_u24 v37, 80, v36')
        e(f'v_lshl_add_u32 v37, v{g}, 11, v37')
        e(f'v_add_u32 v37, {L_KVF}, v37')
        e(f'v_cndmask_b32 v{vBDK}, v38, v37, vcc')
        e(f's_lshl_b32 s{sTMP}, s{sWV}, 4')
        e(f'v_lshl_add_u32 v37, v{g}, 6, v{r16}')
        e(f'v_add_u32 v37, s{sTMP}, v37')
        e(f'v_mul_u32_u24 v37, 144, v37')
        e(f'v_add_u32 v{vKTW}, {L_KT}, v37')
        e(f's_lshl_b32 s{sTMP}, s{sWV}, 6')
        e(f'v_lshrrev_b32 v37, 2, v{r16}')
        e(f'v_lshl_add_u32 v37, v{g}, 3, v37')
        e(f'v_add_u32 v37, s{sTMP}, v37')
        e(f'v_mul_u32_u24 v37, 144, v37')
        e(f'v_lshl_add_u32 v37, v36, 3, v37')
        e(f'v_add_u32 v{vKTR}, {L_KT}, v37')
        e(f'v_mul_u32_u24 v37, 80, v{g}')
        e(f'v_add_u32 v{vCS80}, {L_CSUM}, v37')
        e(f'v_mul_u32_u24 v37, 192, v{g}')
        e(f'v_add_u32 v{vCS192}, {L_CSUM + 4 * CS_W3}, v37')
        e(f's_lshl_b32 s{sTMP}, s{sWV}, 9')
        e(f's_add_u32 s{sTMP}, s{sTMP}, {L_STAT - 2048}')
        e(f'v_add_u32 v{vSTW}, s{sTMP}, v{vL8}')
        e(f's_lshl_b32 s{sTMP}, s{sWV}, 7')
        e(f's_add_u32 s{sTMP}, s{sTMP}, {L_STAT}')
        e(f'v_lshlrev_b32 v37, 3, v{r16}')
        e(f'v_add_u32 v{vSTR}, s{sTMP}, v37')
        e(f'v_lshl_add_u32 v37, v{g}, 2, v37')
        e(f'v_cmp_gt_u32 vcc, 2, v{g}')
        e(f'v_cndmask_b32 v{vSTG}, v35, v37, vcc')
        e(f'v_cmp_eq_u32 vcc, 0, v0')
        e(f'v_cndmask_b32 v{vLane0}, v35, v0, vcc')
        e(f'v_mov_b32 v{vOne}, 1')
        e(f's_lshl_b32 s{sTMP}, s15, 5')
        e(f's_mul_i32 s{sKVPL}, s{sTMP}, 3840')
        e(f's_mul_i32 s{sTMP2}, s{sRB}, 3840')
        e(f's_add_u32 s{sKVPS}, s{sKVPL}, s{sTMP2}')
        e(f's_lshl_b32 s{sTMP2}, s{sRB}, 7')
        e(f's_add_u32 s{sKVPL}, s{sKVPL}, s{sTMP2}')
        e(f's_lshl_b32 s{sKVFL}, s15, 11')
        e(f's_lshl_b32 s{sTMP2}, s{sRB}, 6')
        e(f's_add_u32 s{sKVFS}, s{sKVFL}, s{sTMP2}')
        e(f's_mov_b32 s{sLOG2E}, {f32(1.4426950408889634)}')
        e(f's_mov_b32 s{sLOG2E + 1}, {f32(1.4426950408889634)}')
        c1 = -2.0 * 0.7978845608028654 * 1.4426950408889634
        e(f's_mov_b32 s{sC1}, {f32(c1)}')
        e(f's_mov_b32 s{sC2}, {f32(c1 * 0.044715)}')
        if self.stamps:
            e(f's_lshl_b32 s{sTMP}, s2, 2')
            e(f's_add_u32 s{sTMP}, s{sTMP}, s{sWV}')
            e(f's_lshl_b32 s{sTMP}, s{sTMP}, 9')
            e(f's_add_u32 s{sSTAMP + 2}, s{sTMP}, {0x8000000}')
        e(f's_mul_i32 s{sTMP}, s{sWV}, 960')
        e(f's_add_u32 s{sTMP}, s{sTMP}, {L_WPHI}')
        e(f'v_add_u32 v37, s{sTMP}, v{vL16}')
        e(f'v_mov_b32 v38, {L_KVF}')
        e(f'v_cmp_gt_u32 vcc, 60, v0')
        e(f'v_cndmask_b32 v37, v38, v37, vcc')
        e(f'ds_write_b128 v37, v[{vS[0]}:{vS[0] + 3}]')
        e(f's_lshl_b32 s{sTMP}, s{sWV}, 9')
        e(f's_add_u32 s{sTMP2}, s{sTMP}, {L_CSUM - 2048}')
        e(f'v_add_u32 v37, s{sTMP2}, v{vL8}')
        e(f'ds_write_b64 v37, v[{vS[0] + 4}:{vS[0] + 5}]')
        e(f's_add_u32 s{sTMP2}, s{sTMP}, {L_ZERO - 2048}')
        e(f'v_add_u32 v37, s{sTMP2}, v{vL8}')
        e('v_mov_b32 v38, 0'); e('v_mov_b32 v39, 0')
        e(f'ds_write_b64 v37, v[38:39]')
        for k in range(10):
            e(f'v_lshlrev_b32 v{vR0 + 2 * k}, 16, v{xb + k}')
            e(f'v_and_b32 v{vR0 + 2 * k + 1}, 0xffff0000, v{xb + k}')

    def layer(self, ly):
        e = self.e
        fb = ly * NFRAG
        A5 = lambda ps, s: vA + 20 * ps + 4 * s
        fl = lambda ph: (ly * 6 + ph) * 4096
        W = f's[{sWS}:{sWS + 3}]'
        S3 = vS[3]
        self.stamp(f'L{ly}.start')
        if ly > 0: self.poll(sFX, ((ly - 1) * 6 + PH_X) * 4096, 2)
        self.stamp(f'L{ly}.x_ready')
        side = self.first_chunk_side(act(ly, 'X'), statbase=stat(ly, 0))
        self.chunk(fb + FB_K, 5, 5, A5, side=side, extra_after_bar=self.stat_reads())
        for x in self.cs_reads(vS[0], vCS80, 4 * CS_K, 5): e(x)
        for x in self.stat_finish(): e(x)
        self.center(S3, vS[0], 20); self.scale(S3, S3, vR, 20)
        self.phi(vR1)
        for k in range(5): e(f'ds_write_b128 v{vKTW}, v[{vR1 + 4 * k}:{vR1 + 4 * k + 3}] offset:{16 * k}')
        self.stamp(f'L{ly}.k_done')
        self.chunk(fb + FB_V, 5, 5, A5)
        for x in self.cs_reads(vS[0], vCS80, 4 * CS_V, 5): e(x)
        self.center(S3, vS[0], 20); self.scale(S3, S3, vR, 20)
        self.pack(vS[0], S3, 20)
        e(f'v_mov_b32 v{vS[0] + 10}, 0x3f80'); e(f'v_mov_b32 v{vS[0] + 11}, 0')
        for k in range(3): e(f'ds_write_b128 v{vKTW}, v[{vS[0] + 4 * k}:{vS[0] + 4 * k + 3}] offset:{80 + 16 * k}')
        e('@wait_lds'); e('s_barrier')
        Dv = vS[2]
        for st in range(2):
            for k, c0 in enumerate((0, 16, 32, 40, 48)):
                b = vS[st] + 4 * k
                for hf in range(2):
                    e(f'ds_read_b64_tr_b16 v[{b + 2 * hf}:{b + 2 * hf + 1}], v{vKTR} offset:{(st * 32 + hf * 4) * 144 + 2 * c0}')
        e(f'v_and_b32 v{vX + 4}, 15, v0')
        e(f'v_and_b32 v{vX + 5}, 48, v0')
        e(f'v_mul_u32_u24 v{vX}, 160, v{vX + 4}')
        e(f'v_add_u32 v{vX}, v{vX}, v{vX + 5}')
        e(f'v_mov_b32 v{vX + 6}, 0x80000000')
        e(f'v_subrev_u32 v{vX + 4}, 8, v{vX + 4}')
        e(f'v_cmp_gt_u32 vcc, 5, v{vX + 4}')
        e(f'v_add_u32 v{vX + 1}, 1280, v{vX}')
        e(f'v_cndmask_b32 v{vX + 1}, v{vX + 6}, v{vX + 1}, vcc')
        e(f'v_cmp_gt_u32 vcc, 32, v0')
        e(f'v_cndmask_b32 v{vX + 2}, v{vX + 6}, v{vX}, vcc')
        e(f'v_cndmask_b32 v{vX + 3}, v{vX + 6}, v{vX + 1}, vcc')
        for st in range(2):
            for a in range(3):
                for b in range(2):
                    d = Dv + 4 * (2 * a + b)
                    c = '0' if st == 0 else f'v[{d}:{d + 3}]'
                    fa = vS[st] + 4 * a; fbb = vS[st] + 12 + 4 * b
                    e(f'v_mfma_f32_16x16x32_bf16 v[{d}:{d + 3}], v[{fa}:{fa + 3}], v[{fbb}:{fbb + 3}], {c}')
        e('@nopf_on')
        e(f's_add_u32 s{sTMP}, s{sKVPS}, {WS_KVP + ly * KVP_LAYER}')
        for a in range(3):
            for b in range(2):
                d = Dv + 4 * (2 * a + b)
                e(f'buffer_store_dwordx4 v[{d}:{d + 3}], v{vX + b + (2 if a == 2 else 0)}, {W}, s{sTMP} offen offset:{64 * a} sc1', tag='kvp')
        self.signal('kvp', sFKS, FL_KV1 + ly * 4096)
        e('@nopf_off')
        self.stamp(f'L{ly}.kvp_sent')
        self.chunk(fb + FB_Q, 5, 5, A5)
        for x in self.cs_reads(vS[0], vCS80, 4 * CS_Q, 5): e(x)
        self.center(S3, vS[0], 20); self.scale(S3, S3, vR, 20)
        self.stamp(f'L{ly}.q_gemm')
        self.poll(sFK, FL_KV1 + ly * 4096, 8)
        self.stamp(f'L{ly}.kv1_ready')
        e('@nopf_on')
        e(f'v_lshrrev_b32 v{vA + 16}, 3, v0')
        e(f'v_mul_u32_u24 v{vA + 16}, {4 * 3840}, v{vA + 16}')
        e(f'v_and_b32 v{vA + 17}, 7, v0')
        e(f'v_lshl_add_u32 v{vA + 16}, v{vA + 17}, 4, v{vA + 16}')
        for t in range(4):
            e(f's_add_u32 s{sTMP}, s{sKVPL}, {WS_KVP + ly * KVP_LAYER + 3840 * t}')
            e(f'buffer_load_dwordx4 v[{vA + 4 * t}:{vA + 4 * t + 3}], v{vA + 16}, {W}, s{sTMP} offen sc1')
        e('@nopf_off')
        self.phi(vR1)
        e('@nopf_on')
        for k in (0, 2):
            e(f'v_pk_add_f32 v[{vA + k}:{vA + k + 1}], v[{vA + k}:{vA + k + 1}], v[{vA + 4 + k}:{vA + 5 + k}]')
            e(f'v_pk_add_f32 v[{vA + 8 + k}:{vA + 9 + k}], v[{vA + 8 + k}:{vA + 9 + k}], v[{vA + 12 + k}:{vA + 13 + k}]')
        for k in (0, 2):
            e(f'v_pk_add_f32 v[{vA + k}:{vA + k + 1}], v[{vA + k}:{vA + k + 1}], v[{vA + 8 + k}:{vA + 9 + k}]')
        for k in range(4):
            e(f'v_add_f32_dpp v{vA + 4 + k}, v{vA + k}, v{vA + k} row_ror:8 row_mask:0xf bank_mask:0xf')
        for swap in (16, 32):
            for k in range(4): e(f'v_mov_b32 v{vA + k}, v{vA + 4 + k}')
            for k in range(4): e(f'v_permlane{swap}_swap_b32 v{vA + k}, v{vA + 4 + k}')
            for k in range(4): e(f'v_add_f32 v{vA + 4 + k}, v{vA + k}, v{vA + 4 + k}')
        self.pack(vA, vA + 4, 4)
        e(f'v_lshlrev_b32 v{vA + 17}, 3, v0')
        e(f'v_mov_b32 v{vA + 18}, 0x80000000')
        e(f'v_cmp_gt_u32 vcc, 8, v0')
        e(f'v_cndmask_b32 v{vA + 17}, v{vA + 18}, v{vA + 17}, vcc')
        e(f's_add_u32 s{sTMP}, s{sKVFS}, {WS_KVF + ly * 65536}')
        e(f'buffer_store_dwordx2 v[{vA}:{vA + 1}], v{vA + 17}, {W}, s{sTMP} offen sc1', tag='kvf')
        self.signal('kvf', sFKS, FL_KV2 + ly * 4096)
        e('@nopf_off')
        e('@pf_burst 6')
        self.stamp(f'L{ly}.kvf_sent')
        self.poll(sFK, FL_KV2 + ly * 4096, 8)
        self.stamp(f'L{ly}.kv2_ready')
        e('@nopf_on')
        e(f's_add_u32 s{sTMP}, s{sKVFL}, {WS_KVF + ly * 65536}')
        e(f'buffer_load_dwordx4 v[{vA}:{vA + 3}], v{vL16}, {W}, s{sTMP} offen sc1')
        e(f'buffer_load_dwordx4 v[{vA + 4}:{vA + 7}], v{vL16}, {W}, s{sTMP} offen offset:1024 sc1')
        e('@nopf_off')
        e(f's_lshl_b32 s{sTMP}, s{sWV}, 11')
        e(f's_add_u32 s{sTMP}, s{sTMP}, {L_KVF}')
        e(f'v_add_u32 v{vA + 8}, s{sTMP}, v{vL16}')
        e(f'ds_write_b128 v{vA + 8}, v[{vA}:{vA + 3}]')
        e(f'ds_write_b128 v{vA + 8}, v[{vA + 4}:{vA + 7}] offset:1024')
        e('@wait_lds'); e('s_barrier')
        order = [(j, i) for i in range(5) for j in range(6)]
        nb = 15; fr = vA + 12
        def rd(n):
            j, i = order[n]; b = fr + 4 * (n % nb)
            e(f'ds_read_b128 v[{b}:{b + 3}], v{vBDK} offset:{320 * j + 16 * i}')
        for n in range(nb): rd(n)
        O = vS[0]
        for n, (j, i) in enumerate(order):
            b = fr + 4 * (n % nb); d = O + 4 * j
            c = '0' if i == 0 else f'v[{d}:{d + 3}]'
            e(f'v_mfma_f32_16x16x32_bf16 v[{d}:{d + 3}], v[{b}:{b + 3}], v[{vR1 + 4 * i}:{vR1 + 4 * i + 3}], {c}')
            if n + nb < 30: rd(n + nb)
        e('@nopf_on')
        e(f'v_add_f32 v{vX}, {f32(1e-6)}, v{O + 20}')
        e(f'v_rcp_f32 v{vX}, v{vX}')
        self.scale(O, O, vX, 20)
        self.pack(vS[2], O, 20)
        self.store_x(vS[2], act(ly, 'O'), 'o')
        self.finish_phase('o', fl(PH_O), f'L{ly}.o_sent')
        self.poll(sFX, fl(PH_O), 2)
        self.stamp(f'L{ly}.o_ready')
        side = self.first_chunk_side(act(ly, 'O'))
        self.chunk(fb + FB_WO, 5, 5, A5, cinit=vR0, side=side, warbar=False)
        e('@nopf_on')
        self.pack(vS[0], S3, 20)
        self.store_x(vS[0], act(ly, 'X2'), 'x2')
        self.store_stats(S3, stat(ly, 1), 'x2')
        for k in range(0, 20, 2): e(f'v_mov_b64 v[{vR0 + k}:{vR0 + k + 1}], v[{S3 + k}:{S3 + k + 1}]')
        self.finish_phase('x2', fl(PH_X2), f'L{ly}.x2_sent')
        self.poll(sFX, fl(PH_X2), 2)
        self.stamp(f'L{ly}.x2_ready')
        side = self.first_chunk_side(act(ly, 'X2'), statbase=stat(ly, 1))
        self.chunk(fb + FB_W1, 5, 5, A5, side=side, warbar=False, extra_after_bar=self.stat_reads())
        for x in self.cs_reads(vS[0], vCS80, 4 * CS_W1, 5): e(x)
        for x in self.stat_finish(): e(x)
        e(f'v_mul_f32 v{vT}, v{vR}, v{vR}')
        e(f'v_mov_b32 v{vX + 6}, {f32(EPS)}')
        e(f'v_fma_f32 v{vT}, v{vT}, v{vMean + 1}, v{vX + 6}')
        e(f'v_rsq_f32 v{vT}, v{vT}')
        e(f'v_mul_f32 v{vT}, v{vT}, v{vR}')
        self.gelu_consts(vT)
        self.center(S3, vS[0], 20)
        e('@nopf_on')
        self.gelu(S3, vS[1], 20, vX, vX + 2, vX + 4)
        self.pack(vS[0], S3, 20)
        self.store_x(vS[0], act(ly, 'H'), 'h')
        for k in range(0, 20, 2):
            e(f'v_pk_add_f32 v[{vR1 + k}:{vR1 + k + 1}], v[{vR0 + k}:{vR0 + k + 1}], v[{vMean}:{vMean + 1}] op_sel_hi:[1,0] neg_lo:[0,1] neg_hi:[0,1]')
        self.scale(vR1, vR1, vR, 20)
        self.finish_phase('h', fl(PH_H), f'L{ly}.h_sent')
        self.poll(sFX, fl(PH_H), 2)
        self.poll(sFH, fl(PH_H), 2, mask=sHM, est=350)
        self.stamp(f'L{ly}.h_ready')
        side = self.first_chunk_side(act(ly, 'H'), halo=True)
        self.chunk(fb + FB_W2, 5, 5, A5, cinit=vR1, side=side, warbar=False)
        e('@nopf_on')
        self.pack(vS[0], S3, 20)
        self.store_x(vS[0], act(ly, 'X1'), 'x1')
        self.store_stats(S3, stat(ly, 2), 'x1')
        for k in range(0, 20, 2):
            e(f'v_pk_add_f32 v[{vR0 + k}:{vR0 + k + 1}], v[{vR0 + k}:{vR0 + k + 1}], v[{S3 + k}:{S3 + k + 1}]')
        self.finish_phase('x1', fl(PH_X1), f'L{ly}.x1_sent')
        self.poll(sFX, fl(PH_X1), 2)
        self.stamp(f'L{ly}.x1_ready')
        for c in range(3):
            if c == 0:
                side = self.first_chunk_side(act(ly, 'X1'), statbase=stat(ly, 2), per=20)
                self.chunk(fb + FB_W3, 4, 5, A5, side=side, warbar=False, extra_after_bar=self.stat_reads())
                for x in self.stat_finish(): e(x)
                self.gelu_consts(vR)
            else:
                self.chunk(fb + FB_W3 + 20 * c, 4, 5, A5)
            for x in self.cs_reads(vS[0], vCS192, 64 * c, 4): e(x)
            self.center(S3, vS[0], 16)
            if c == 2: e('@nopf_on')
            self.gelu(S3, vS[1], 16, vX, vX + 2, vX + 4)
            self.pack(vS[0], S3, 16)
            e(f's_add_u32 s{sTMP}, s{sOWN3}, {act(ly, "H3") + 2048 * c}')
            e(f'buffer_store_dwordx4 v[{vS[0]}:{vS[0] + 3}], v{vL16}, {W}, s{sTMP} offen sc1', tag='h3')
            e(f'buffer_store_dwordx4 v[{vS[0] + 4}:{vS[0] + 7}], v{vL16}, {W}, s{sTMP} offen offset:1024 sc1', tag='h3')
        self.finish_phase('h3', fl(PH_H3), f'L{ly}.h3_sent')
        self.poll(sFX, fl(PH_H3), 2)
        self.stamp(f'L{ly}.h3_ready')
        b3 = act(ly, 'H3')
        A6 = lambda ps, s: vA + 24 * ps + 4 * s
        e('@nopf_on')
        for gq in (0, 1):
            for x in self.a3_loads(gq, b3): e(x)
        for half in range(2):
            side = {}
            for ps in range(4):
                gq = half * 4 + ps + 2
                if gq < 8:
                    for k, x in enumerate(self.a3_loads(gq, b3)):
                        side.setdefault(ps * 30 + k * 5, []).append(x)
            if half == 1: side.setdefault(59, []).append('@nopf_off')
            self.chunk(fb + FB_W4 + 30 * half, 5, 6, A6, cinit=vR0, side=side, first=(half == 0), last=(half == 1), warbar=False)
        e('@nopf_on')
        self.pack(vS[0], S3, 20)
        if ly == 0:
            self.store_x(vS[0], act(1, 'X'), 'x')
            self.store_stats(S3, stat(1, 0), 'x')
            for k in range(0, 20, 2): e(f'v_mov_b64 v[{vR0 + k}:{vR0 + k + 1}], v[{S3 + k}:{S3 + k + 1}]')
            self.finish_phase('x', fl(PH_X), f'L{ly}.x_sent')
        else:
            e(f's_lshl_b32 s{sTMP}, s{sRB}, 2')
            e(f's_add_u32 s{sTMP}, s{sTMP}, s{sWV}')
            e(f's_mul_i32 s{sTMP}, s{sTMP}, {16 * 1280}')
            e(f's_mul_i32 s{sTMP2}, s{sCS}, 160')
            e(f's_add_u32 s{sTMP}, s{sTMP}, s{sTMP2}')
            e(f'v_and_b32 v{vX}, 15, v0')
            e(f'v_lshrrev_b32 v{vX + 1}, 4, v0')
            e(f'v_mul_u32_u24 v{vX}, 1280, v{vX}')
            e(f'v_mad_u32_u24 v{vX}, v{vX + 1}, 40, v{vX}')
            O_ = f's[{sOUT}:{sOUT + 3}], s{sTMP} offen'
            e(f'buffer_store_dwordx4 v[{vS[0]}:{vS[0] + 3}], v{vX}, {O_}')
            e(f'buffer_store_dwordx4 v[{vS[0] + 4}:{vS[0] + 7}], v{vX}, {O_} offset:16')
            e(f'buffer_store_dwordx2 v[{vS[0] + 8}:{vS[0] + 9}], v{vX}, {O_} offset:32')
            self.stamp(f'L{ly}.end')

    def finish_phase(self, tag, floff, name):
        self.e('@nopf_off')
        self.e('@pf_burst 5')
        self.e('@nopf_on')
        self.signal(tag, sFXS, floff)
        self.e('@nopf_off')
        self.e('s_barrier')
        self.e('@pf_burst 6')
        self.stamp(name)

COST = {'mfma': 16, 'valu': 5, 'trans': 8, 'salu': 4, 'dsr': 8, 'dsw': 14, 'vld': 8, 'vst': 8, 'smem': 4, 'wait': 4, 'nop': 4, 'barrier': 20, 'branch': 4, 'label': 0, 'pseudo': 0}

def prefetch_pass(ins, total):
    first = {}; last = {}
    for pos, i in enumerate(ins):
        if i.meta and i.meta[0] == 'W':
            first.setdefault(i.meta[1], pos); last[i.meta[1]] = pos
    out = []; n = 0; t = 0; tl = -10**9; allow = False; curbase = None; free_valu = 0
    def issue(n):
        nonlocal curbase
        idx = n % NFRAG
        base = (idx >> 2) * 4096
        if base != curbase:
            out.append(I(f's_mov_b32 s{sWO}, {WS_W + base}')); curbase = base
        sl = 4 * (n % POOL)
        out.append(I(f'buffer_load_dwordx4 a[{sl}:{sl + 3}], v{vW}, s[{sWS}:{sWS + 3}], s{sWO} offen offset:{(idx & 3) * 1024}'))
    free = lambda n, pos: n < total and (n < POOL or last[n - POOL] < pos)
    forced = 0
    for pos, i in enumerate(ins):
        if i.kind == 'pseudo':
            a = i.op.split()
            if a[0] == '@nopf_on': allow = False; continue
            if a[0] == '@nopf_off': allow = True; continue
            if a[0] == '@time': t += int(a[1]); continue
            if a[0] == '@entry_loads':
                for _ in range(10): issue(n); n += 1
                allow = True; tl = t; continue
            if a[0] == '@pf_burst':
                for _ in range(int(a[1])):
                    if free(n, pos): issue(n); n += 1; tl = t
                continue
        if i.meta and i.meta[0] == 'W':
            while n <= i.meta[1]:
                assert free(n, pos), (n, pos)
                issue(n); n += 1; tl = t; forced += 1
        if allow and t - tl >= PACE and free(n, pos) and i.kind not in ('branch', 'label'):
            issue(n); n += 1; tl = t
        out.append(i)
        if i.kind == 'vld': tl = t
        c = COST[i.kind]
        if i.kind == 'mfma': free_valu = 8
        elif free_valu > 0 and i.kind != 'pseudo':
            d = min(c, free_valu); free_valu -= d; c -= d
        t += c
    assert n == total, n
    return out, forced, t

def main_kernel(name, stamps=False):
    g = Gen(stamps)
    Gen.stamp_names = []
    g.stamp_names = Gen.stamp_names
    g.prologue()
    g.layer(0)
    g.layer(1)
    g.e('L_main_exit:')
    g.e('s_endpgm')
    ins, forced, t = prefetch_pass(g.p.ins, 2 * NFRAG)
    ins = insert_nops(insert_waits(ins))
    info = dict(n=len(ins), forced=forced, est=t, stamps=list(g.stamp_names))
    return f'{name}:\n' + render(ins) + '\n', info
```

```python
from asmgen import *
from layout import *

PREP_BLOCK = 320
N_SW = 228
N_XW = 205
PREP_GRID = N_SW + N_XW
PREP_LDS = 40 * 128

def vdiv(p, dst, src, div, maxval):
    mul, sh = magic(div, maxval)
    p.e(f'v_mul_u32_u24 v{dst}, {mul}, v{src}')
    p.e(f'v_lshrrev_b32 v{dst}, {sh}, v{dst}')

def vrem(p, dst, src, quo, div):
    p.e(f'v_mul_u32_u24 v{dst}, {div}, v{quo}')
    p.e(f'v_sub_u32 v{dst}, v{src}, v{dst}')

def swizzle_role(kind):
    p = Prog()
    p.e('v_and_b32 v1, 7, v0')
    p.e('v_lshrrev_b32 v2, 3, v0')
    p.e('s_lshl_b32 s18, s13, 3')
    p.e('v_add_u32 v3, s18, v1')
    if kind == 'w3':
        vdiv(p, 4, 3, 48, 383); vrem(p, 7, 3, 4, 48)
        vdiv(p, 5, 7, 12, 47); vrem(p, 6, 7, 5, 12)
        p.e('v_lshrrev_b32 v7, 2, v6')
        p.e('v_mul_u32_u24 v7, 20, v7')
        p.e('v_and_b32 v6, 3, v6')
        p.e('v_add_u32 v6, v6, v7')
        nt = 4
    else:
        vdiv(p, 4, 3, 20, 159); vrem(p, 7, 3, 4, 20)
        vdiv(p, 5, 7, 5, 19); vrem(p, 6, 7, 5, 5)
        nt = 5
    p.e('v_lshlrev_b32 v8, 3, v3')
    p.e('v_add_u32 v8, s14, v8')
    p.e(f'v_mul_u32_u24 v9, {4 * NFRAG}, v4')
    p.e('v_add3_u32 v9, v9, v6, s15')
    p.e('v_lshlrev_b32 v9, 10, v9')
    p.e('v_lshl_add_u32 v9, v5, 6, v9')
    if kind == 'w4':
        p.e('v_cmp_gt_u32 vcc, 32, v2')
        p.e('s_lshl_b32 s18, s17, 6')
    for u in range(2):
        b = 16 + u * 8
        o, w, s, gk, r0, r1, dst = b, b + 1, b + 2, b + 3, b + 4, b + 5, b + 6
        if kind == 'w4':
            p.e(f'v_add_u32 v{o}, s18, v2')
            if u: p.e(f'v_add_u32 v{o}, 32, v{o}')
            vdiv(p, w, o, 48, 255); vrem(p, s, o, w, 48)
            p.e(f'v_and_b32 v{gk}, 3, v{o}')
            p.e(f'v_lshrrev_b32 v{s}, 2, v{s}')
            vdiv(p, r1, s, 6, 11)
            p.e(f'v_mul_u32_u24 v{r0}, 384, v{w}')
            p.e(f'v_mul_u32_u24 v{r1}, 144, v{r1}')
            p.e(f'v_add_u32 v{r0}, v{r0}, v{r1}')
            p.e(f'v_mul_u32_u24 v{r1}, 48, v{gk}')
            p.e(f'v_add_u32 v{r0}, v{r0}, v{r1}')
            p.e(f'v_lshl_add_u32 v{r0}, v{s}, 3, v{r0}')
            p.e(f'v_add_u32 v{r1}, 4, v{r0}')
        else:
            p.e(f'v_add_u32 v{o}, {40 * u}, v2')
            vdiv(p, w, o, 20, 79); vrem(p, s, o, w, 20)
            p.e(f'v_and_b32 v{gk}, 3, v{o}')
            p.e(f'v_lshrrev_b32 v{s}, 2, v{s}')
            p.e(f'v_mul_u32_u24 v{r0}, 160, v{w}')
            p.e(f'v_mul_u32_u24 v{r1}, 20, v{gk}')
            p.e(f'v_add_u32 v{r0}, v{r0}, v{r1}')
            p.e(f'v_lshl_add_u32 v{r0}, v{s}, 3, v{r0}')
            p.e(f'v_cmp_lt_u32 s[24:25], 2, v{s}')
            p.e(f'v_cndmask_b32 v{r1}, 0, 56, s[24:25]')
            p.e(f'v_add_u32 v{r0}, v{r0}, v{r1}')
            p.e(f'v_cmp_eq_u32 s[24:25], 2, v{s}')
            p.e(f'v_mov_b32 v{r1}, 80')
            p.e(f'v_cndmask_b32 v{r1}, 4, v{r1}, s[24:25]')
            p.e(f'v_add_u32 v{r1}, v{r0}, v{r1}')
        p.e(f'v_mul_lo_u32 v{r0}, v{r0}, s12')
        p.e(f'v_mul_lo_u32 v{r1}, v{r1}, s12')
        p.e(f'v_add_u32 v{r0}, v{r0}, v8')
        p.e(f'v_add_u32 v{r1}, v{r1}, v8')
        p.e(f'v_mul_u32_u24 v{dst}, {NFRAG}, v{w}')
        p.e(f'v_mul_u32_u24 v{s}, {nt}, v{s}')
        p.e(f'v_add_lshl_u32 v{dst}, v{dst}, v{s}, 10')
        p.e(f'v_lshl_add_u32 v{dst}, v{gk}, 8, v{dst}')
        p.e(f'v_add_u32 v{dst}, v{dst}, v9')
        if kind == 'w4':
            p.e(f'v_mov_b32 v{o}, 0x80000000')
            p.e(f'v_cndmask_b32 v{r0}, v{o}, v{r0}, vcc')
            p.e(f'v_cndmask_b32 v{r1}, v{o}, v{r1}, vcc')
            p.e(f'v_cndmask_b32 v{dst}, v{o}, v{dst}, vcc')
    p.e('s_mov_b32 s26, 0')
    p.e('s_mov_b32 s27, s12')
    p.e('s_lshl_b32 s28, s12, 1')
    p.e('s_add_u32 s29, s28, s12')
    for u in range(2):
        b = 16 + u * 8
        for e in range(8):
            L = 32 + u * 16 + e * 2
            p.e(f'buffer_load_dwordx2 v[{L}:{L + 1}], v{b + 4 + (e >> 2)}, s[8:11], s{26 + (e & 3)} offen')
    p.e('s_mov_b32 s30, 0x05040100')
    p.e('s_mov_b32 s31, 0x07060302')
    for u in range(2):
        b = 16 + u * 8
        for c in range(4):
            O = 64 + u * 16 + c * 4
            for pr in range(4):
                lo = 32 + u * 16 + (2 * pr) * 2 + (c >> 1); hi = lo + 2
                p.e(f'v_perm_b32 v{O + pr}, v{hi}, v{lo}, s{30 + (c & 1)}')
            p.e(f'buffer_store_dwordx4 v[{O}:{O + 3}], v{b + 6}, s[20:23], 0 offen offset:{16 * c}')
    if kind != 'w4':
        lab = f'L_prep_nocs_{kind}'
        p.e('s_cmp_eq_u32 s16, -1')
        p.e(f's_cbranch_scc1 {lab}')
        for c in range(4): p.e(f'v_mov_b32 v{96 + c}, 0')
        for k in range(16):
            for hf in range(2):
                L = 32 + k * 2 + hf
                p.e(f'v_lshlrev_b32 v100, 16, v{L}')
                p.e(f'v_and_b32 v101, 0xffff0000, v{L}')
                p.e(f'v_add_f32 v{96 + 2 * hf}, v{96 + 2 * hf}, v100')
                p.e(f'v_add_f32 v{97 + 2 * hf}, v{97 + 2 * hf}, v101')
        p.e('v_lshlrev_b32 v102, 4, v0')
        p.e('ds_write_b128 v102, v[96:99]')
        p.e('@wait_lds')
        p.e('s_barrier')
        p.e('v_and_b32 v103, 31, v0')
        p.e('v_lshlrev_b32 v102, 2, v103')
        for k in range(40): p.e(f'ds_read_b32 v{104 + k}, v102 offset:{128 * k}')
        for k in range(1, 40): p.e(f'v_add_f32 v104, v104, v{104 + k}')
        width = 192 if kind == 'w3' else 80
        p.e('s_lshl_b32 s18, s13, 5')
        p.e('v_add_u32 v103, s18, v103')
        vdiv(p, 105, 103, width, 1535 if kind == 'w3' else 639)
        p.e(f'v_mul_u32_u24 v105, {512 - width}, v105')
        p.e('v_add3_u32 v103, v103, v105, s16')
        p.e('v_lshlrev_b32 v103, 2, v103')
        p.e('v_mov_b32 v105, 0x80000000')
        p.e('v_cmp_gt_u32 vcc, 32, v0')
        p.e('v_cndmask_b32 v103, v105, v103, vcc')
        p.e(f's_mov_b32 s18, {WS_CSUM}')
        p.e('buffer_store_dword v104, v103, s[20:23], s18 offen')
        p.e(f'{lab}:')
    p.e('s_endpgm')
    return finalize(p)

def stats_reduce(p, a, b, t):
    p.e(f'v_permlane16_swap_b32 v{a}, v{b}')
    p.e(f'v_add_f32 v{a}, v{a}, v{b}')
    p.e(f'v_mov_b32 v{t}, v{a}')
    p.e(f'v_permlane32_swap_b32 v{a}, v{t}')
    p.e(f'v_add_f32 v{a}, v{a}, v{t}')

def x_role():
    p = Prog()
    p.e('v_lshrrev_b32 v1, 6, v0')
    p.e('s_mul_i32 s17, s16, 5')
    p.e('v_add_u32 v1, s17, v1')
    p.e('v_and_b32 v2, 63, v0')
    p.e('v_and_b32 v3, 15, v2')
    p.e('v_lshrrev_b32 v4, 4, v2')
    p.e('v_lshrrev_b32 v5, 3, v1')
    p.e('v_and_b32 v6, 7, v1')
    p.e('v_lshl_add_u32 v7, v5, 4, v3')
    p.e('v_mul_u32_u24 v7, 1280, v7')
    p.e('v_mul_u32_u24 v8, 160, v6')
    p.e('v_mul_u32_u24 v9, 40, v4')
    p.e('v_add3_u32 v7, v7, v8, v9')
    p.e('buffer_load_dwordx4 v[16:19], v7, s[8:11], 0 offen')
    p.e('buffer_load_dwordx4 v[20:23], v7, s[8:11], 0 offen offset:16')
    p.e('buffer_load_dwordx2 v[24:25], v7, s[8:11], 0 offen offset:32')
    p.e(f's_mul_i32 s17, s16, {PREP_BLOCK}')
    p.e('v_add_u32 v30, s17, v0')
    p.e('v_min_u32 v31, 8191, v30')
    vdiv(p, 32, 31, 12, 8191); vrem(p, 33, 31, 32, 12)
    vdiv(p, 34, 32, 20, 700); vrem(p, 35, 32, 34, 20)
    p.e('v_mul_u32_u24 v34, 800, v34')
    p.e('v_mul_u32_u24 v36, 80, v33')
    p.e('v_lshl_add_u32 v34, v35, 1, v34')
    p.e('v_add_u32 v34, v34, v36')
    p.e('v_mov_b32 v37, 0x80000000')
    p.e('v_cmp_gt_u32 vcc, 10, v33')
    p.e('v_cndmask_b32 v34, v37, v34, vcc')
    p.e('buffer_load_ushort v38, v34, s[12:15], 0 offen')
    p.e('buffer_load_ushort v39, v34, s[12:15], 0 offen offset:40')
    p.e('v_lshlrev_b32 v40, 2, v30')
    p.e(f'v_cmp_gt_u32 vcc, {FLAG_BYTES // 4}, v30')
    p.e('v_cndmask_b32 v41, v37, v40, vcc')
    p.e('v_mov_b32 v42, 0')
    p.e(f's_mov_b32 s18, {WS_FLAG}')
    p.e('buffer_store_dword v42, v41, s[20:23], s18 offen')
    p.e('v_mul_u32_u24 v10, 2560, v1')
    p.e('v_cmp_gt_u32 vcc, 1024, v1')
    p.e('v_cndmask_b32 v10, v37, v10, vcc')
    p.e('v_lshl_add_u32 v11, v2, 4, v10')
    p.e('v_lshl_add_u32 v12, v2, 3, v10')
    p.e(f's_mov_b32 s18, {act(0, "X")}')
    p.e('buffer_store_dwordx4 v[16:19], v11, s[20:23], s18 offen')
    p.e('buffer_store_dwordx4 v[20:23], v11, s[20:23], s18 offen offset:1024')
    p.e('buffer_store_dwordx2 v[24:25], v12, s[20:23], s18 offen offset:2048')
    p.e('v_mov_b32 v44, 0')
    p.e('v_mov_b32 v45, 0')
    for k in range(10):
        p.e(f'v_lshlrev_b32 v46, 16, v{16 + k}')
        p.e(f'v_and_b32 v47, 0xffff0000, v{16 + k}')
        p.e('v_add_f32 v44, v44, v46')
        p.e('v_fmac_f32 v45, v46, v46')
        p.e('v_add_f32 v44, v44, v47')
        p.e('v_fmac_f32 v45, v47, v47')
    stats_reduce(p, 44, 45, 46)
    p.e('v_lshrrev_b32 v47, 2, v5')
    p.e('v_lshl_add_u32 v47, v47, 3, v6')
    p.e('v_lshlrev_b32 v47, 9, v47')
    p.e('v_and_b32 v48, 3, v5')
    p.e('v_lshl_add_u32 v48, v48, 4, v3')
    p.e('v_lshl_add_u32 v47, v48, 3, v47')
    p.e('v_and_b32 v48, 1, v4')
    p.e('v_lshl_add_u32 v47, v48, 2, v47')
    p.e('v_cndmask_b32 v47, v37, v47, vcc')
    p.e(f's_mov_b32 s18, {stat(0, 0)}')
    p.e('buffer_store_dword v44, v47, s[20:23], s18 offen')
    p.e('v_lshl_or_b32 v38, v39, 16, v38')
    p.e('v_cmp_gt_u32 vcc, 7680, v30')
    p.e('v_cndmask_b32 v41, v37, v40, vcc')
    p.e(f's_mov_b32 s18, {WS_WPHI}')
    p.e('buffer_store_dword v38, v41, s[20:23], s18 offen')
    p.e('s_endpgm')
    return finalize(p)

def srd(d, ptr, size):
    return f"""  s_mov_b32 s{d}, s{ptr}
  s_and_b32 s{d + 1}, s{ptr + 1}, 0xffff
  s_mov_b32 s{d + 2}, {size}
  s_mov_b32 s{d + 3}, 0x00020000"""

def prep_kernel(name):
    mats = [
        ('wqkv', 0, 60), ('wo', 60, 20), ('w1', 80, 20), ('w2', 100, 20), ('w3', 120, 48), ('w4', 168, 60)]
    t = f"""{name}:
  s_cmp_ge_u32 s2, {PREP_GRID}
  s_cbranch_scc1 L_prep_exit
  s_load_dwordx16 s[32:47], s[0:1], 0
  s_load_dwordx8 s[48:55], s[0:1], 64
  s_waitcnt lgkmcnt(0)
{srd(20, 54, WS_SIZE)}
  s_mov_b32 s17, 0
  s_cmp_ge_u32 s2, {N_SW}
  s_cbranch_scc1 L_prep_x
  s_cmp_ge_u32 s2, 168
  s_cbranch_scc1 L_prep_w4
  s_cmp_ge_u32 s2, 120
  s_cbranch_scc1 L_prep_w3
  s_cmp_ge_u32 s2, 60
  s_cbranch_scc1 L_prep_sq
{srd(8, 34, D * 3 * D * 2)}
  s_mov_b32 s12, 3840
  s_mov_b32 s13, s2
  s_mov_b32 s14, 0
  s_mov_b32 s15, {FB_Q}
  s_mov_b32 s16, {CS_Q}
  s_cmp_lt_u32 s2, 20
  s_cbranch_scc1 L_prep_n80
  s_sub_u32 s13, s2, 20
  s_mov_b32 s14, 1280
  s_mov_b32 s15, {FB_K}
  s_mov_b32 s16, {CS_K}
  s_cmp_lt_u32 s2, 40
  s_cbranch_scc1 L_prep_n80
  s_sub_u32 s13, s2, 40
  s_mov_b32 s14, 2560
  s_mov_b32 s15, {FB_V}
  s_mov_b32 s16, {CS_V}
  s_branch L_prep_n80
L_prep_sq:
  s_mov_b32 s12, 1280
  s_mov_b32 s14, 0
{srd(8, 38, D * D * 2)}
  s_sub_u32 s13, s2, 60
  s_mov_b32 s15, {FB_WO}
  s_mov_b32 s16, -1
  s_cmp_lt_u32 s2, 80
  s_cbranch_scc1 L_prep_n80
{srd(8, 42, D * D * 2)}
  s_sub_u32 s13, s2, 80
  s_mov_b32 s15, {FB_W1}
  s_mov_b32 s16, {CS_W1}
  s_cmp_lt_u32 s2, 100
  s_cbranch_scc1 L_prep_n80
{srd(8, 44, D * D * 2)}
  s_sub_u32 s13, s2, 100
  s_mov_b32 s15, {FB_W2}
  s_mov_b32 s16, -1
L_prep_n80:
{swizzle_role('n80')}
L_prep_w3:
{srd(8, 46, D * F * 2)}
  s_mov_b32 s12, 3072
  s_sub_u32 s13, s2, 120
  s_mov_b32 s14, 0
  s_mov_b32 s15, {FB_W3}
  s_mov_b32 s16, {CS_W3}
{swizzle_role('w3')}
L_prep_w4:
{srd(8, 48, F * D * 2)}
  s_mov_b32 s12, 1280
  s_sub_u32 s13, s2, 168
  s_mov_b32 s14, 0
  s_mov_b32 s15, {FB_W4}
  s_mov_b32 s16, -1
  s_cmp_lt_u32 s13, 20
  s_cbranch_scc1 L_prep_w4b
  s_sub_u32 s13, s13, 20
  s_mov_b32 s17, 1
  s_cmp_lt_u32 s13, 20
  s_cbranch_scc1 L_prep_w4b
  s_sub_u32 s13, s13, 20
  s_mov_b32 s17, 2
L_prep_w4b:
{swizzle_role('w4')}
L_prep_x:
{srd(8, 32, S * D * 2)}
{srd(12, 36, H * DH * DH * 2)}
  s_sub_u32 s16, s2, {N_SW}
{x_role()}
L_prep_exit:
  s_endpgm
"""
    return t
```

```python
import sys, json
sys.path.insert(0, 'gen')
from prep import *
from main import *
NAME = 'interleave_layers__linear_kernel_hedgehog__mixer_s_mlp__prompt'
def kd(name, vgpr, acc, sgpr):
    return f""".p2align 6
.amdhsa_kernel {name}
  .amdhsa_next_free_vgpr {vgpr}
  .amdhsa_next_free_sgpr {sgpr}
  .amdhsa_accum_offset {acc}
  .amdhsa_group_segment_fixed_size 0
  .amdhsa_kernarg_size 96
  .amdhsa_user_sgpr_count 2
  .amdhsa_user_sgpr_kernarg_segment_ptr 1
  .amdhsa_system_sgpr_workgroup_id_x 1
  .amdhsa_float_denorm_mode_32 3
.end_amdhsa_kernel
"""
def build(out, stamps=False):
    hdr = [l for l in open(f'cdna_kernels/{NAME}.s.ref').read().split('\n') if l.startswith(';') and 'launch' not in l and 'grid=ceil' not in l]
    mk, info = main_kernel(NAME + '_kernel', stamps)
    t = '\n'.join(hdr) + f"""
; @launch kernel=prep_kernel grid=({PREP_GRID},1,1) block=({PREP_BLOCK},1,1) lds={PREP_LDS}
; @launch kernel={NAME}_kernel grid=(256,1,1) block=(256,1,1) lds={MAIN_LDS}
.amdgcn_target "amdgcn-amd-amdhsa--gfx950"
.text
.globl prep_kernel
.p2align 8
.type prep_kernel,@function
{prep_kernel('prep_kernel')}
.globl {NAME}_kernel
.p2align 8
.type {NAME}_kernel,@function
{mk}
.section .rodata,"a"
{kd('prep_kernel', 80, 80, 72)}
{kd(NAME + '_kernel', 512, 256, 102)}
"""
    open(out, 'w').write(t)
    json.dump(info, open(out + '.json', 'w'))
    print(out, len(t), 'bytes', {k: v for k, v in info.items() if k != 'stamps'})
if __name__ == '__main__':
    if len(sys.argv) > 1:
        build(sys.argv[1], stamps=True); sys.exit()
    build(f'cdna_kernels/{NAME}.s')
    build('k_stamp.s', stamps=True)
```

```python
S, D, F, H, DH = 2048, 640, 1536, 32, 20
NFRAG = 270
FB_K, FB_V, FB_Q, FB_WO, FB_W1, FB_W2, FB_W3, FB_W4 = 0, 25, 50, 75, 100, 125, 150, 210
WS_W = 0x0000000
WS_CSUM = 0x0900000
CS_K, CS_V, CS_Q, CS_W1, CS_W3 = 0, 80, 160, 240, 320
WS_WPHI = 0x0910000
WS_ID = 0x0920000
WS_STAT = 0x0940000
STAT_SZ = 0x20000
WS_KVF = 0x0A00000
KVF_LAYER = 32 * 4096
WS_KVP = 0x0A80000
KVP_LAYER = 32 * 32 * 3840
ACT = 0x280000
WS_ACT = 0x1200000
H_SZ = 160 * 20480
LAYER_ACT = 4 * ACT + H_SZ + 0x600000
def act(layer, name):
    o = {'X': 0, 'O': ACT, 'X2': 2 * ACT, 'X1': 3 * ACT, 'H': 4 * ACT, 'H3': 4 * ACT + H_SZ}[name]
    return WS_ACT + layer * LAYER_ACT + o
def stat(layer, k): return WS_STAT + (layer * 3 + k) * STAT_SZ
WS_SIZE = 0x10000000
assert WS_KVP + 2 * KVP_LAYER <= WS_ACT and WS_KVF + 2 * KVF_LAYER <= WS_KVP
assert 8 * 4 * NFRAG * 1024 <= WS_CSUM
KA_X, KA_WQKV, KA_WPHI, KA_WO, KA_BX, KA_W1, KA_W2, KA_W3, KA_W4, KA_OUT, KA_DBG, KA_WS = [8 * i for i in range(12)]
```

```python
import struct
from asmgen import *
from layout import *
from prep import stats_reduce, srd

def f32(x): return '0x%08x' % struct.unpack('<I', struct.pack('<f', x))[0]

L_RED, L_KT = 0, 61440
L_WPHI = L_KT + 36864
L_CSUM = L_WPHI + 3840
L_STAT = L_CSUM + 2048
L_KVF = L_STAT + 2048
L_ZERO = L_KVF + 8192
MAIN_LDS = L_ZERO + 2048
vL16, vL8, vW = 1, 2, 3
vRW = [4, 5, 6]; vRR = 7
vBDW, vBDK, vKTW, vKTR, vCS80, vCS192, vSTW, vSTR = 8, 9, 10, 11, 12, 13, 14, 15
vH16 = [16, 18, 20, 22]; vH8 = [17, 19, 21, 23]
vHS16, vHS8, vSTG = 24, 25, 26
vT = 27
vMean, vR = 28, 30
vA = 32
vPOI = vA + 80
vK = vA + 84
vS = [128, 148, 168, 188]
vR0, vR1 = 208, 228
vX = 248
sWS, sOUT = 4, 8
sRB, sCS, sWV, sHD = 12, 13, 14, 15
sT = [16, 17, 18, 19]; sT3 = [20, 21, 22, 23]
sOWN, sOWN3, sSTL, sSTS = 24, 25, 26, 27
sHALO, sMODE, sXCC = 28, 29, 30
sTO, sWO, sTMP, sTMP2, sFT = 40, 41, 42, 43, 44
sP = 46
sKVPS, sKVPL, sKVFS, sKVFL = 52, 53, 54, 55
sLOG2E, sC1, sC2, sHW = 56, 58, 59, 60
sSTB = 63
POOL = 64
PACE = 72
NEED = 25
LOOK = 12
EPS = 1e-5
WSR = f's[{sWS}:{sWS + 3}]'

class Gen:
    def __init__(self, stamps=False):
        self.p = Prog()
        self.ool = []
        self.nlab = 0
        self.stamps = stamps
        self.stamp_names = []
        self.pending = 0
    def e(self, *a, **k): self.p.e(*a, **k)
    def lab(self, s):
        self.nlab += 1
        return f'L_{s}_{self.nlab}'

    def tick_s(self, name):
        if not self.stamps: return None
        r = 64 + 2 * self.pending
        assert r < 101
        self.pending += 1
        self.stamp_names.append(name)
        return f's_memtime s[{r}:{r + 1}]'
    def tick(self, name):
        t = self.tick_s(name)
        if t: self.e(t)
    def flush(self):
        if not self.stamps or not self.pending: return
        n0 = len(self.stamp_names) - self.pending
        self.e('s_waitcnt lgkmcnt(0)')
        for k in range(self.pending):
            self.e(f'v_writelane_b32 v{vT}, s{64 + 2 * k}, {k}')
        self.e(f'v_lshlrev_b32 v{vX + 7}, 2, v0')
        self.e(f'v_cmp_gt_u32 vcc, {self.pending}, v0')
        self.e(f'v_cndmask_b32 v{vX + 7}, v{vSTG}, v{vX + 7}, vcc')
        self.e(f'v_mov_b32 v{vX + 6}, 0x80000000')
        self.e(f'v_cndmask_b32 v{vX + 7}, v{vX + 6}, v{vX + 7}, vcc')
        self.e(f'buffer_store_dword v{vT}, v{vX + 7}, {WSR}, s{sSTB} offen offset:{4 * n0}')
        self.pending = 0

    def dual_store(self, stores, tag=None):
        Ls = self.lab('slow'); Lb = self.lab('back')
        out = [f's_cmp_eq_u32 s{sMODE}, 0', f's_cbranch_scc1 {Ls}'] + stores + [f'{Lb}:']
        self.ool.append(f'{Ls}:\n  s_nop 3\n' + '\n'.join('  ' + x + ' sc1' for x in stores) + f'\n  s_branch {Lb}')
        return out
    def emit_group(self, lst, tag=None):
        self.e('@hold_on')
        for x in lst: self.e(x, tag=tag)
        self.e('@hold_off')

    def check(self, regs, reload, after=None):
        Lr = self.lab('retry'); Lk = self.lab('ok'); Lo = self.lab('rout')
        def mx():
            out = []; rs = list(regs)
            if len(rs) == 1: return [f'v_cmp_eq_u32 vcc, -1, v{rs[0]}']
            if len(rs) == 2: out.append(f'v_max_u32 v{vT}, v{rs[0]}, v{rs[1]}'); rs = []
            else: out.append(f'v_max3_u32 v{vT}, v{rs[0]}, v{rs[1]}, v{rs[2]}'); rs = rs[3:]
            while len(rs) >= 2:
                out.append(f'v_max3_u32 v{vT}, v{vT}, v{rs[0]}, v{rs[1]}'); rs = rs[2:]
            if rs: out.append(f'v_max_u32 v{vT}, v{vT}, v{rs[0]}')
            out.append(f'v_cmp_eq_u32 vcc, -1, v{vT}')
            return out
        flat = lambda L: [y for x in L for y in x.split('\n')]
        blk = [f'{Lr}:', f'  s_sub_u32 s{sTO}, s{sTO}, 1', f'  s_cbranch_scc1 {Lo}_to'] + ['  ' + x for x in flat(reload)] + ['  s_waitcnt vmcnt(0)'] + \
              ['  ' + x for x in mx()] + ['  s_nop 1', f'  s_cbranch_vccnz {Lr}', f'{Lo}:'] + ['  ' + x for x in flat(after or [])] + [f'  s_branch {Lk}',
               f'{Lo}_to:', f'  s_mov_b32 s{sTO}, 0', '  s_waitcnt vmcnt(0)', f'  s_branch {Lo}']
        self.ool.append('\n'.join(blk))
        return mx() + [f's_cbranch_vccnz {Lr}\n{Lk}:']

    def a_loads(self, ps, base, halo=False):
        A = vA + 20 * ps
        t = sTMP2
        if halo:
            pre = f's_add_u32 s{t}, s{sHW}, {base}\n'; v16, v8 = vH16[ps], vH8[ps]
        else:
            pre = f's_add_u32 s{t}, s{sT[ps]}, {base}\n'; v16, v8 = vL16, vL8
        W = f'{WSR}, s{t} offen'
        return [pre + f'buffer_load_dwordx4 v[{A}:{A + 3}], v{v16}, {W} sc1',
                pre + f'buffer_load_dwordx4 v[{A + 4}:{A + 7}], v{v16}, {W} offset:1024 sc1',
                pre + f'buffer_load_dwordx2 v[{A + 8}:{A + 9}], v{v8}, {W} sc1',
                pre + f'buffer_load_dwordx2 v[{A + 10}:{A + 11}], v{v8}, {W} offset:2560 sc1',
                pre + f'buffer_load_dwordx4 v[{A + 12}:{A + 15}], v{v16}, {W} offset:2560 sc1',
                pre + f'buffer_load_dwordx4 v[{A + 16}:{A + 19}], v{v16}, {W} offset:3584 sc1']
    def a_chk(self, ps): return [vA + 20 * ps + k for k in (0, 4, 8, 10, 12, 16)]
    def a3_loads(self, grp, base):
        half, ps = grp >> 2, grp & 3
        A = vA + 24 * (grp & 3)
        t = sTMP2
        return [f's_add_u32 s{t}, s{sT3[ps]}, {base + half * 6144 + (4096 if k >= 4 else 0)}\n'
                f'buffer_load_dwordx4 v[{A + 4 * k}:{A + 4 * k + 3}], v{vL16}, {WSR}, s{t} offen offset:{1024 * (k & 3)} sc1' for k in range(6)]
    def a3_chk(self, grp): return [vA + 24 * (grp & 3) + 4 * k for k in range(6)]
    @staticmethod
    def dedup(loads):
        out = []; prev = None
        for x in loads:
            a, b = x.split('\n')
            if a != prev: out.append(a); prev = a
            out.append(b)
        return out

    def stat_loads(self, base):
        pre = f's_add_u32 s{sTMP2}, s{sSTL}, {base - 2048}\n'
        return [pre + f'buffer_load_dwordx2 v[{vX}:{vX + 1}], v{vL8}, {WSR}, s{sTMP2} offen sc1',
                pre + f'buffer_load_dwordx2 v[{vX + 2}:{vX + 3}], v{vL8}, {WSR}, s{sTMP2} offen offset:512 sc1']
    def stat_to_lds(self):
        return [f'v_add_f32 v{vX}, v{vX}, v{vX + 2}', f'v_add_f32 v{vX + 1}, v{vX + 1}, v{vX + 3}',
                f'ds_write_b64 v{vSTW}, v[{vX}:{vX + 1}]']
    def stat_reads(self):
        return [f'ds_read_b64 v[{vX + 2 * k}:{vX + 2 * k + 1}], v{vSTR} offset:{512 * k}' for k in range(4)]
    def stat_finish(self):
        return [f'v_add_f32 v{vX}, v{vX}, v{vX + 2}', f'v_add_f32 v{vX + 1}, v{vX + 1}, v{vX + 3}',
                f'v_add_f32 v{vX + 4}, v{vX + 4}, v{vX + 6}', f'v_add_f32 v{vX + 5}, v{vX + 5}, v{vX + 7}',
                f'v_add_f32 v{vX}, v{vX}, v{vX + 4}', f'v_add_f32 v{vX + 1}, v{vX + 1}, v{vX + 5}',
                f'v_mul_f32 v{vMean}, {f32(1 / 640)}, v{vX}', f'v_mul_f32 v{vX + 1}, {f32(1 / 640)}, v{vX + 1}',
                f'v_fma_f32 v{vMean + 1}, -v{vMean}, v{vMean}, v{vX + 1}', f'v_max_f32 v{vMean + 1}, 0, v{vMean + 1}',
                f'v_add_f32 v{vR + 1}, {f32(EPS)}, v{vMean + 1}', f'v_rsq_f32 v{vR}, v{vR + 1}']

    def x_stores(self, pk, base, fill=False, soff=sOWN, v16=vL16, v8=vL8, st=sTMP):
        W = f'{WSR}, s{st} offen'
        r = (lambda o, n: f'v[{vPOI}:{vPOI + n - 1}]') if fill else (lambda o, n: f'v[{pk + o}:{pk + o + n - 1}]')
        return f's_add_u32 s{st}, s{soff}, {base}', [f'buffer_store_dwordx4 {r(0, 4)}, v{v16}, {W}',
                f'buffer_store_dwordx4 {r(4, 4)}, v{v16}, {W} offset:1024', f'buffer_store_dwordx2 {r(8, 2)}, v{v8}, {W}']
    def h3_stores(self, pk, base, c, fill=False, st=sTMP):
        r = (lambda o: f'v[{vPOI}:{vPOI + 3}]') if fill else (lambda o: f'v[{pk + o}:{pk + o + 3}]')
        return f's_add_u32 s{st}, s{sOWN3}, {base + 2048 * c}', [f'buffer_store_dwordx4 {r(0)}, v{vL16}, {WSR}, s{st} offen',
                f'buffer_store_dwordx4 {r(4)}, v{vL16}, {WSR}, s{st} offen offset:1024']
    def st_stores(self, reg, base, st=sTMP):
        return f's_add_u32 s{st}, s{sSTS}, {base}', [f'buffer_store_dword v{reg}, v{vSTG}, {WSR}, s{st} offen']
    def put(self, pre_st, tag=None, sc1=False):
        pre, st = pre_st
        body = [x + ' sc1' for x in st] if sc1 else self.dual_store(st)
        return ('\n'.join(['@hold_on', pre] + body + ['@hold_off']), tag)
    def fills(self, ly, names, sc1=False):
        out = []
        for n in names:
            if n in ('X', 'O', 'X2', 'X1', 'H'):
                out.append(self.put(self.x_stores(0, act(ly, n), fill=True, st=sFT), 'fill', sc1))
                if n in ('X', 'X2', 'X1'):
                    out.append(self.put(self.st_stores(vPOI, stat(ly, {'X': 0, 'X2': 1, 'X1': 2}[n]), st=sFT), 'fill', sc1))
            elif n == 'H3':
                for c in range(3): out.append(self.put(self.h3_stores(0, act(ly, 'H3'), c, fill=True, st=sFT), 'fill', sc1))
            elif n == 'HALO':
                out.append(self.put(self.x_stores(0, act(ly, 'H'), fill=True, soff=sHALO, v16=vHS16, v8=vHS8, st=sFT), 'fill', True))
            elif n == 'KVP':
                pre = f's_add_u32 s{sFT}, s{sKVPS}, {WS_KVP + ly * KVP_LAYER}'
                st = [f'buffer_store_dwordx4 v[{vPOI}:{vPOI + 3}], v{vL16}, {WSR}, s{sFT} offen offset:{o}' for o in (0, 1024, 2048, 2816)]
                out.append(self.put((pre, st[:2]), 'fill', True)); out.append(self.put((pre, st[2:]), 'fill', True))
            elif n == 'KVF':
                pre = f's_add_u32 s{sFT}, s{sKVFS}, {WS_KVF + ly * KVF_LAYER}'
                out.append(self.put((pre, [f'buffer_store_dword v{vPOI}, v{vSTG}, {WSR}, s{sFT} offen']), 'fill', True))
        return out
    def emit_items(self, items):
        for x in items:
            if isinstance(x, tuple): self.e(x[0], tag=x[1])
            else: self.e(x)
    def sanitize(self, regs):
        for r in regs: self.e(f'v_min_u32 v{r}, -2, v{r}')

    def chunk(self, frag0, nt, ks, areg, cinit=None, side=None, pre=None, first=True, last=True, endbar=False, extra_after_bar=None, name=None):
        side = {k: list(v) for k, v in (side or {}).items()}
        pre = {k: list(v) for k, v in (pre or {}).items()}
        per = ks * nt
        def add(pos, ins): side.setdefault(pos, []).append(ins)
        tail = []
        if last:
            for ps in range(3):
                for j in range(nt):
                    add(ps * per + (j + 1) * ks + 2, f'ds_write_b128 v{vRW[ps]}, v[{vS[ps] + 4 * j}:{vS[ps] + 4 * j + 3}] offset:{1024 * j}')
            at = 3 * per + 4
            add(at, '@wait_lds'); add(at, 's_barrier')
            rds = list(extra_after_bar or [])
            for j in range(nt):
                for q in range(3):
                    rds.append(f'ds_read_b128 v[{vS[q] + 4 * j}:{vS[q] + 4 * j + 3}], v{vRR} offset:{5120 * q + 1024 * j}')
            for k, x in enumerate(rds): add(at + k // 2, x)
            pos = at + len(rds) // 2 + 1
            adds = []
            for j in range(nt):
                for k in range(4): adds.append((j, f'v_add_f32 v{vS[0] + 4 * j + k}, v{vS[0] + 4 * j + k}, v{vS[1] + 4 * j + k}'))
                for k in range(4): adds.append((j, f'v_add_f32 v{vS[0] + 4 * j + k}, v{vS[0] + 4 * j + k}, v{vS[2] + 4 * j + k}'))
            nfit = max(0, (4 * per - pos) * 2) // 8
            nfit = min(nfit, nt)
            for k, (j, x) in enumerate(adds[:8 * nfit]): add(pos + k // 2, x)
            for j in range(nfit, nt):
                for q in (1, 2):
                    for k in (0, 2):
                        a = vS[0] + 4 * j + k; b = vS[q] + 4 * j + k
                        tail.append(f'v_pk_add_f32 v[{a}:{a + 1}], v[{a}:{a + 1}], v[{b}:{b + 1}]')
            for k in range(0, 4 * nt, 2):
                tail.append(f'v_pk_add_f32 v[{vS[3] + k}:{vS[3] + k + 1}], v[{vS[0] + k}:{vS[0] + k + 1}], v[{vS[3] + k}:{vS[3] + k + 1}]')
        n = 0
        for ps in range(4):
            if name: self.tick(f'{name}.p{ps}')
            for j in range(nt):
                for s in range(ks):
                    d = vS[ps] + 4 * j
                    if s == 0 and first:
                        c = f'v[{cinit + 4 * j}:{cinit + 4 * j + 3}]' if (ps == 3 and cinit is not None) else '0'
                    else:
                        c = f'v[{d}:{d + 3}]'
                    g = frag0 + j * ks + s
                    sl = 4 * (g % POOL)
                    a = areg(ps, s)
                    self.emit_items(pre.pop(n, []))
                    self.e(f'v_mfma_f32_16x16x32_bf16 v[{d}:{d + 3}], a[{sl}:{sl + 3}], v[{a}:{a + 3}], {c}', meta=('W', g))
                    self.emit_items(side.pop(n, []))
                    n += 1
        assert not pre
        for k in sorted(side): self.emit_items(side[k])
        if name: self.tick(f'{name}.mfma_end')
        self.emit_items(tail)
        if endbar: self.e('s_barrier')

    def start_phase(self, base, halo=False, statbase=None, per=25, checked=True, fills=None):
        self.e('@pf_need')
        self.e('@nopf_on')
        if checked: self.e('@hold_on')
        l0 = self.a_loads(0, base, halo)
        l1 = (self.stat_loads(statbase) if statbase is not None else []) + self.a_loads(1, base, halo)
        for x in self.dedup(l0) + self.dedup(l1): self.e(x)
        self.e('s_barrier')
        side = {}; pre = {}
        step = per // 6
        for ps in (2, 3):
            for k, x in enumerate(self.a_loads(ps, base, halo)):
                side.setdefault((ps - 2) * per + k * step, []).append(x)
        side.setdefault(2 * per - 3, []).append('@nopf_off')
        if checked:
            pre[0] = self.check(self.a_chk(0), self.dedup(l0), self.dedup(l1)) + ['@hold_off']
            for ps in (1, 2, 3):
                regs = self.a_chk(ps) + ([vX, vX + 2] if (ps == 1 and statbase is not None) else [])
                c = self.check(regs, self.dedup(l1 if ps == 1 else self.a_loads(ps, base, halo)))
                for k, x in enumerate(c[:-1]): side.setdefault(ps * per - 1 - (len(c) - 2 - k) // 2, []).append(x)
                pre[ps * per] = [c[-1]]
        if statbase is not None:
            for k, x in enumerate(self.stat_to_lds()): side.setdefault(per + 3 + k, []).append(x)
        for k, x in enumerate(fills or []): side.setdefault(2 * per + 1 + 5 * k, []).append(x)
        return side, pre

    def cs_reads(self, dst, vaddr, off, n4):
        return [f'ds_read_b128 v[{dst + 4 * k}:{dst + 4 * k + 3}], v{vaddr} offset:{off + 16 * k}' for k in range(n4)]
    def center(self, acc, cs, n):
        for k in range(0, n, 2):
            self.e(f'v_pk_fma_f32 v[{acc + k}:{acc + k + 1}], v[{cs + k}:{cs + k + 1}], v[{vMean}:{vMean + 1}], v[{acc + k}:{acc + k + 1}] op_sel_hi:[1,0,1] neg_lo:[0,1,0] neg_hi:[0,1,0]')
    def scale(self, dst, src, sc, n):
        for k in range(0, n, 2):
            self.e(f'v_pk_mul_f32 v[{dst + k}:{dst + k + 1}], v[{src + k}:{src + k + 1}], v[{sc}:{sc + 1}] op_sel_hi:[1,0]')
    def pack(self, dst, src, n):
        for k in range(0, n, 2):
            self.e(f'v_cvt_pk_bf16_f32 v{dst + k // 2}, v{src + k}, v{src + k + 1}')
    def gelu(self, t, tmp, n, c1, c2, ir, quiet=False):
        for k in range(0, n, 2):
            T = f'v[{t + k}:{t + k + 1}]'; U = f'v[{tmp + k}:{tmp + k + 1}]'
            self.e(f'v_pk_mul_f32 {U}, {T}, {T}')
            self.e(f'v_pk_fma_f32 {U}, {U}, v[{c2}:{c2 + 1}], v[{c1}:{c1 + 1}] op_sel_hi:[1,0,0]')
            self.e(f'v_pk_mul_f32 {U}, {U}, {T}')
        for k in range(n): self.e(f'v_exp_f32 v{tmp + k}, v{tmp + k}')
        for k in range(0, n, 2):
            U = f'v[{tmp + k}:{tmp + k + 1}]'
            self.e(f'v_pk_fma_f32 {U}, {U}, v[{ir}:{ir + 1}], v[{ir}:{ir + 1}] op_sel_hi:[1,0,0]')
        for k in range(n): self.e(f'v_rcp_f32 v{tmp + k}, v{tmp + k}')
        for k in range(0, n, 2):
            T = f'v[{t + k}:{t + k + 1}]'; U = f'v[{tmp + k}:{tmp + k + 1}]'
            self.e(f'v_pk_mul_f32 {T}, {T}, {U}')
    def gelu_consts(self, r):
        self.e(f'v_mul_f32 v{vX}, s{sC1}, v{r}')
        self.e(f'v_mul_f32 v{vX + 2}, v{r}, v{r}')
        self.e(f'v_mul_f32 v{vX + 2}, v{vX + 2}, v{r}')
        self.e(f'v_mul_f32 v{vX + 2}, s{sC2}, v{vX + 2}')
        self.e(f'v_rcp_f32 v{vX + 4}, v{r}')

    def out_x(self, src, base, statbase=None):
        pk = vS[0]
        self.pack(pk, src, 20)
        self.sanitize([pk, pk + 4, pk + 8])
        self.e('@wait_tag fill')
        self.emit_items([self.put(self.x_stores(pk, base))])
        if statbase is not None:
            x = src; a, b = vX, vX + 2
            self.e(f'v_pk_add_f32 v[{a}:{a + 1}], v[{x}:{x + 1}], v[{x + 2}:{x + 3}]')
            self.e(f'v_pk_mul_f32 v[{b}:{b + 1}], v[{x}:{x + 1}], v[{x}:{x + 1}]')
            self.e(f'v_pk_fma_f32 v[{b}:{b + 1}], v[{x + 2}:{x + 3}], v[{x + 2}:{x + 3}], v[{b}:{b + 1}]')
            for k in range(4, 20, 2):
                self.e(f'v_pk_add_f32 v[{a}:{a + 1}], v[{a}:{a + 1}], v[{x + k}:{x + k + 1}]')
                self.e(f'v_pk_fma_f32 v[{b}:{b + 1}], v[{x + k}:{x + k + 1}], v[{x + k}:{x + k + 1}], v[{b}:{b + 1}]')
            self.e(f'v_add_f32 v{a}, v{a}, v{a + 1}')
            self.e(f'v_add_f32 v{b}, v{b}, v{b + 1}')
            stats_reduce(self.p, a, b, a + 1)
            self.e(f'v_min_u32 v{vX + 4}, -2, v{a}')
            self.emit_items([self.put(self.st_stores(vX + 4, statbase))])

    def phi(self, out):
        kb = vS[0]; fr = vS[0] + 12; P = vS[2]
        nb = 7
        order = [(jf, sd) for sd in range(3) for jf in range(5)]
        def rd(i):
            jf, sd = order[i]; b = fr + 4 * (i % nb)
            self.e(f'ds_read_b128 v[{b}:{b + 3}], v{vBDW} offset:{192 * jf + 16 * sd}')
        for i in range(nb): rd(i)
        self.pack(kb, vS[3], 20)
        self.e(f'v_mov_b32 v{kb + 10}, 0'); self.e(f'v_mov_b32 v{kb + 11}, 0')
        for i, (jf, sd) in enumerate(order):
            b = fr + 4 * (i % nb); d = P + 4 * jf
            c = '0' if sd == 0 else f'v[{d}:{d + 3}]'
            self.e(f'v_mfma_f32_16x16x32_bf16 v[{d}:{d + 3}], v[{b}:{b + 3}], v[{kb + 4 * sd}:{kb + 4 * sd + 3}], {c}')
            if i + nb < 15: rd(i + nb)
        mx, mn = vX, vX + 2
        self.e(f'v_max3_f32 v{mx}, v{P}, v{P + 1}, v{P + 2}')
        self.e(f'v_min3_f32 v{mn}, v{P}, v{P + 1}, v{P + 2}')
        for k in range(3, 19, 2):
            self.e(f'v_max3_f32 v{mx}, v{mx}, v{P + k}, v{P + k + 1}')
            self.e(f'v_min3_f32 v{mn}, v{mn}, v{P + k}, v{P + k + 1}')
        self.e(f'v_max_f32 v{mx}, v{mx}, v{P + 19}')
        self.e(f'v_min_f32 v{mn}, v{mn}, v{P + 19}')
        self.e(f'v_mul_f32 v{mx}, s{sLOG2E}, v{mx}')
        self.e(f'v_mul_f32 v{mn}, s{sLOG2E}, v{mn}')
        E = vS[3]
        for k in range(0, 20, 2):
            self.e(f'v_pk_fma_f32 v[{E + k}:{E + k + 1}], v[{P + k}:{P + k + 1}], s[{sLOG2E}:{sLOG2E + 1}], v[{mx}:{mx + 1}] op_sel_hi:[1,0,0] neg_lo:[0,0,1] neg_hi:[0,0,1]')
            self.e(f'v_pk_fma_f32 v[{P + k}:{P + k + 1}], v[{P + k}:{P + k + 1}], s[{sLOG2E}:{sLOG2E + 1}], v[{mn}:{mn + 1}] op_sel_hi:[1,0,0] neg_lo:[1,0,0] neg_hi:[1,0,0]')
        for k in range(20): self.e(f'v_exp_f32 v{E + k}, v{E + k}')
        for k in range(20): self.e(f'v_exp_f32 v{P + k}, v{P + k}')
        for (B, s_) in ((E, mx), (P, mn)):
            self.e(f'v_pk_add_f32 v[{s_}:{s_ + 1}], v[{B}:{B + 1}], v[{B + 2}:{B + 3}]')
            for k in range(4, 20, 2):
                self.e(f'v_pk_add_f32 v[{s_}:{s_ + 1}], v[{s_}:{s_ + 1}], v[{B + k}:{B + k + 1}]')
            self.e(f'v_add_f32 v{s_}, v{s_}, v{s_ + 1}')
            self.e(f'v_rcp_f32 v{s_}, v{s_}')
        self.scale(E, E, mx, 20); self.scale(P, P, mn, 20)
        self.pack(out, E, 20); self.pack(out + 10, P, 20)

    def prologue(self):
        e = self.e
        e('s_cmp_ge_u32 s2, 256')
        e('s_cbranch_scc1 L_main_exit')
        e(f's_load_dwordx2 s[{sOUT}:{sOUT + 1}], s[0:1], {KA_OUT}')
        e(f's_load_dwordx2 s[{sWS}:{sWS + 1}], s[0:1], {KA_WS}')
        e('v_lshrrev_b32 v32, 6, v0')
        e(f'v_readfirstlane_b32 s{sWV}, v32')
        e('v_and_b32 v0, 63, v0')
        e(f's_lshr_b32 s{sTMP}, s2, 3')
        e(f's_and_b32 s{sCS}, s{sTMP}, 7')
        e(f's_lshr_b32 s{sTMP}, s{sTMP}, 3')
        e(f's_and_b32 s{sRB}, s2, 7')
        e(f's_lshl_b32 s{sRB}, s{sRB}, 2')
        e(f's_add_u32 s{sRB}, s{sRB}, s{sTMP}')
        e(f'v_lshlrev_b32 v{vL16}, 4, v0')
        e(f'v_lshlrev_b32 v{vL8}, 3, v0')
        e(f'v_add_u32 v{vL8}, 2048, v{vL8}')
        e(f's_lshl_b32 s{sHD}, s{sCS}, 2')
        e(f's_add_u32 s{sHD}, s{sHD}, s{sWV}')
        e(f's_mul_i32 s{sTMP}, s{sHD}, {NFRAG * 1024}')
        e(f'v_add_u32 v{vW}, s{sTMP}, v{vL16}')
        for ps in range(4):
            e(f's_add_u32 s{sTMP}, s{sWV}, {ps + 1}')
            e(f's_and_b32 s{sTMP}, s{sTMP}, 3')
            if ps < 3:
                e(f's_mul_i32 s{sTMP2}, s{sTMP}, 15360')
                e(f's_add_u32 s{sTMP2}, s{sTMP2}, {L_RED + 5120 * ps}')
                e(f'v_add_u32 v{vRW[ps]}, s{sTMP2}, v{vL16}')
            e(f's_lshl_b32 s{sTMP2}, s{sRB}, 2')
            e(f's_add_u32 s{sTMP}, s{sTMP}, s{sTMP2}')
            e(f's_lshl_b32 s{sP + ps}, s{sTMP}, 4')
            e(f's_mul_i32 s{sT[ps]}, s{sTMP}, 20480')
            e(f's_mul_i32 s{sTMP2}, s{sWV}, 5120')
            e(f's_add_u32 s{sT[ps]}, s{sT[ps]}, s{sTMP2}')
            e(f's_mul_i32 s{sT3[ps]}, s{sTMP}, 49152')
            e(f's_mul_i32 s{sTMP2}, s{sWV}, 12288')
            e(f's_add_u32 s{sT3[ps]}, s{sT3[ps]}, s{sTMP2}')
        e(f's_mul_i32 s{sHW}, s{sWV}, 5120')
        e(f's_lshl_b32 s{sTMP}, s{sRB}, 2')
        e(f's_add_u32 s{sTMP}, s{sTMP}, s{sWV}')
        e(f's_lshl_b32 s{sTMP}, s{sTMP}, 3')
        e(f's_add_u32 s{sTMP}, s{sTMP}, s{sCS}')
        e(f's_mul_i32 s{sOWN}, s{sTMP}, 2560')
        e(f's_mul_i32 s{sOWN3}, s{sTMP}, 6144')
        e(f's_lshl_b32 s{sTMP}, s{sRB}, 12')
        e(f's_lshl_b32 s{sTMP2}, s{sWV}, 10')
        e(f's_add_u32 s{sSTL}, s{sTMP}, s{sTMP2}')
        e(f's_lshl_b32 s{sTMP2}, s{sCS}, 9')
        e(f's_add_u32 s{sSTS}, s{sTMP}, s{sTMP2}')
        e(f's_lshl_b32 s{sTMP2}, s{sWV}, 7')
        e(f's_add_u32 s{sSTS}, s{sSTS}, s{sTMP2}')
        e('s_waitcnt lgkmcnt(0)')
        e(f's_and_b32 s{sWS + 1}, s{sWS + 1}, 0xffff')
        e(f's_mov_b32 s{sWS + 2}, {WS_SIZE}')
        e(f's_mov_b32 s{sWS + 3}, 0x00020000')
        e(f's_and_b32 s{sOUT + 1}, s{sOUT + 1}, 0xffff')
        e(f's_mov_b32 s{sOUT + 2}, {S * D * 2}')
        e(f's_mov_b32 s{sOUT + 3}, 0x00020000')
        self.tick('entry')
        e(f's_mul_i32 s{sTMP}, s{sHD}, 960')
        e(f's_add_u32 s{sTMP}, s{sTMP}, {WS_WPHI}')
        e(f'buffer_load_dwordx4 v[{vS[0]}:{vS[0] + 3}], v{vL16}, {WSR}, s{sTMP} offen')
        e(f's_lshl_b32 s{sTMP}, s{sHD}, 9')
        e(f's_add_u32 s{sTMP}, s{sTMP}, {WS_CSUM - 2048}')
        e(f'buffer_load_dwordx2 v[{vS[0] + 4}:{vS[0] + 5}], v{vL8}, {WSR}, s{sTMP} offen')
        e(f's_add_u32 s{sTMP}, s{sOWN}, {act(0, "X")}')
        W = f'{WSR}, s{sTMP} offen'
        xb = vS[1]
        e(f'buffer_load_dwordx4 v[{xb}:{xb + 3}], v{vL16}, {W}')
        e(f'buffer_load_dwordx4 v[{xb + 4}:{xb + 7}], v{vL16}, {W} offset:1024')
        e(f'buffer_load_dwordx2 v[{xb + 8}:{xb + 9}], v{vL8}, {W}')
        e('@entry_loads')
        e(f's_mov_b32 s{sTO}, 20000')
        e(f's_mov_b32 s{sMODE}, 0')
        e(f's_getreg_b32 s{sXCC}, hwreg(HW_REG_XCC_ID)')
        e(f's_and_b32 s{sXCC}, s{sXCC}, 15')
        e(f's_add_u32 s{sXCC}, s{sXCC}, 1')
        e(f's_and_b32 s{sTMP}, s{sWV}, 1')
        e(f's_cmp_eq_u32 s{sTMP}, 1')
        e(f's_cselect_b32 s61, 1, -1')
        e(f's_lshr_b32 s{sTMP}, s{sWV}, 1')
        e(f's_lshl_b32 s61, s61, s{sTMP}')
        t = vA + 40
        r16, g, oob = t, t + 1, t + 2
        a, b, c = t + 3, t + 4, t + 5
        e(f'v_and_b32 v{r16}, 15, v0')
        e(f'v_lshrrev_b32 v{g}, 4, v0')
        e(f'v_mov_b32 v{oob}, 0x80000000')
        e(f's_mov_b32 s62, 20480')
        for ps in range(4):
            e(f's_add_u32 s{sTMP}, s{sP + ps}, s61')
            e(f'v_add_u32 v{a}, s{sTMP}, v{r16}')
            e(f'v_lshrrev_b32 v{b}, 4, v{a}')
            e(f'v_lshrrev_b32 v{c}, 6, v{a}')
            e(f'v_cmp_eq_u32 vcc, s{sRB}, v{c}')
            e(f'v_add_u32 v{c}, 128, v{c}')
            e(f'v_cndmask_b32 v{b}, v{c}, v{b}, vcc')
            e(f'v_cmp_gt_u32 vcc, 2048, v{a}')
            e(f'v_mul_lo_u32 v{b}, v{b}, s62')
            e(f'v_and_b32 v{a}, 15, v{a}')
            e(f'v_lshl_add_u32 v{a}, v{g}, 4, v{a}')
            e(f'v_lshl_add_u32 v{vH16[ps]}, v{a}, 4, v{b}')
            e(f'v_lshl_add_u32 v{vH8[ps]}, v{a}, 3, v{b}')
            e(f'v_add_u32 v{vH8[ps]}, 2048, v{vH8[ps]}')
            e(f'v_cndmask_b32 v{vH16[ps]}, v{oob}, v{vH16[ps]}, vcc')
            e(f'v_cndmask_b32 v{vH8[ps]}, v{oob}, v{vH8[ps]}, vcc')
        e(f's_lshl_b32 s{sTMP}, s{sRB}, 3')
        e(f's_add_u32 s{sTMP}, s{sTMP}, s{sCS}')
        e(f's_add_u32 s{sTMP}, s{sTMP}, 1024')
        e(f's_mul_i32 s{sHALO}, s{sTMP}, 2560')
        e(f's_bitcmp1_b32 s{sCS}, 1')
        e(f's_cselect_b32 s{sTMP}, 0, 62')
        e(f's_lshl_b32 s{sTMP2}, s{sWV}, 4')
        e(f's_sub_u32 s{sTMP}, s{sTMP2}, s{sTMP}')
        e(f'v_add_u32 v{a}, s{sTMP}, v{r16}')
        e(f'v_cmp_gt_u32 vcc, 2, v{a}')
        e(f'v_cndmask_b32 v{vHS16}, v{oob}, v{vL16}, vcc')
        e(f'v_cndmask_b32 v{vHS8}, v{oob}, v{vL8}, vcc')
        e(f's_mul_i32 s{sTMP}, s{sWV}, 15360')
        e(f'v_add_u32 v{vRR}, s{sTMP}, v{vL16}')
        e(f'v_lshrrev_b32 v{a}, 2, v{r16}')
        e(f'v_cmp_eq_u32 vcc, v{a}, v{g}')
        e(f'v_and_b32 v{a}, 3, v0')
        e(f'v_mul_u32_u24 v{b}, 960, v{g}')
        e(f'v_mad_u32_u24 v{b}, v{a}, 48, v{b}')
        e(f'v_add_u32 v{b}, {L_WPHI}, v{b}')
        e(f'v_mov_b32 v{c}, {L_ZERO}')
        e(f'v_cndmask_b32 v{vBDW}, v{c}, v{b}, vcc')
        e(f'v_mul_u32_u24 v{b}, 80, v{a}')
        e(f'v_lshl_add_u32 v{b}, v{g}, 11, v{b}')
        e(f'v_add_u32 v{b}, {L_KVF}, v{b}')
        e(f'v_cndmask_b32 v{vBDK}, v{c}, v{b}, vcc')
        e(f's_lshl_b32 s{sTMP}, s{sWV}, 4')
        e(f'v_lshl_add_u32 v{b}, v{g}, 6, v{r16}')
        e(f'v_add_u32 v{b}, s{sTMP}, v{b}')
        e(f'v_mul_u32_u24 v{b}, 144, v{b}')
        e(f'v_add_u32 v{vKTW}, {L_KT}, v{b}')
        e(f's_lshl_b32 s{sTMP}, s{sWV}, 6')
        e(f'v_lshrrev_b32 v{b}, 2, v{r16}')
        e(f'v_lshl_add_u32 v{b}, v{g}, 3, v{b}')
        e(f'v_add_u32 v{b}, s{sTMP}, v{b}')
        e(f'v_mul_u32_u24 v{b}, 144, v{b}')
        e(f'v_lshl_add_u32 v{b}, v{a}, 3, v{b}')
        e(f'v_add_u32 v{vKTR}, {L_KT}, v{b}')
        e(f'v_mul_u32_u24 v{b}, 80, v{g}')
        e(f'v_add_u32 v{vCS80}, {L_CSUM}, v{b}')
        e(f'v_mul_u32_u24 v{b}, 192, v{g}')
        e(f'v_add_u32 v{vCS192}, {L_CSUM + 4 * CS_W3}, v{b}')
        e(f's_lshl_b32 s{sTMP}, s{sWV}, 9')
        e(f's_add_u32 s{sTMP}, s{sTMP}, {L_STAT - 2048}')
        e(f'v_add_u32 v{vSTW}, s{sTMP}, v{vL8}')
        e(f's_lshl_b32 s{sTMP}, s{sWV}, 7')
        e(f's_add_u32 s{sTMP}, s{sTMP}, {L_STAT}')
        e(f'v_lshlrev_b32 v{b}, 3, v{r16}')
        e(f'v_add_u32 v{vSTR}, s{sTMP}, v{b}')
        e(f'v_lshl_add_u32 v{b}, v{g}, 2, v{b}')
        e(f'v_cmp_gt_u32 vcc, 2, v{g}')
        e(f'v_cndmask_b32 v{vSTG}, v{oob}, v{b}, vcc')
        e(f's_lshl_b32 s{sTMP}, s{sHD}, 5')
        e(f's_mul_i32 s{sKVPL}, s{sTMP}, 3840')
        e(f's_mul_i32 s{sTMP2}, s{sRB}, 3840')
        e(f's_add_u32 s{sKVPS}, s{sKVPL}, s{sTMP2}')
        e(f's_lshl_b32 s{sTMP2}, s{sRB}, 7')
        e(f's_add_u32 s{sKVPL}, s{sKVPL}, s{sTMP2}')
        e(f's_lshl_b32 s{sKVFL}, s{sHD}, 12')
        e(f's_add_u32 s{sKVFS}, s{sKVFL}, s{sTMP2}')
        e(f's_mov_b32 s{sLOG2E}, {f32(1.4426950408889634)}')
        e(f's_mov_b32 s{sLOG2E + 1}, {f32(1.4426950408889634)}')
        c1 = -2.0 * 0.7978845608028654 * 1.4426950408889634
        e(f's_mov_b32 s{sC1}, {f32(c1)}')
        e(f's_mov_b32 s{sC2}, {f32(c1 * 0.044715)}')
        if self.stamps:
            e(f's_lshl_b32 s{sTMP}, s2, 2')
            e(f's_add_u32 s{sTMP}, s{sTMP}, s{sWV}')
            e(f's_lshl_b32 s{sTMP}, s{sTMP}, 10')
            e(f's_add_u32 s{sSTB}, s{sTMP}, {0x8000000}')
        e(f's_mul_i32 s{sTMP}, s{sWV}, 960')
        e(f's_add_u32 s{sTMP}, s{sTMP}, {L_WPHI}')
        e(f'v_add_u32 v{b}, s{sTMP}, v{vL16}')
        e(f'v_mov_b32 v{c}, {L_KVF}')
        e(f'v_cmp_gt_u32 vcc, 60, v0')
        e(f'v_cndmask_b32 v{b}, v{c}, v{b}, vcc')
        e(f'ds_write_b128 v{b}, v[{vS[0]}:{vS[0] + 3}]')
        e(f's_lshl_b32 s{sTMP}, s{sWV}, 9')
        e(f's_add_u32 s{sTMP2}, s{sTMP}, {L_CSUM - 2048}')
        e(f'v_add_u32 v{b}, s{sTMP2}, v{vL8}')
        e(f'ds_write_b64 v{b}, v[{vS[0] + 4}:{vS[0] + 5}]')
        e(f's_add_u32 s{sTMP2}, s{sTMP}, {L_ZERO - 2048}')
        e(f'v_add_u32 v{b}, s{sTMP2}, v{vL8}')
        e(f'v_mov_b32 v{t + 6}, 0'); e(f'v_mov_b32 v{t + 7}, 0')
        e(f'ds_write_b64 v{b}, v[{t + 6}:{t + 7}]')
        for k in range(10):
            e(f'v_lshlrev_b32 v{vR0 + 2 * k}, 16, v{xb + k}')
            e(f'v_and_b32 v{vR0 + 2 * k + 1}, 0xffff0000, v{xb + k}')

    def layer(self, ly):
        e = self.e
        fb = ly * NFRAG
        A5 = lambda ps, s: vA + 20 * ps + 4 * s
        S3 = vS[3]
        N = f'L{ly}'
        for k in range(4): e(f'v_mov_b32 v{vPOI + k}, -1')
        self.tick(f'{N}.start')
        if ly == 0:
            fl = self.fills(0, ['KVP', 'KVF', 'O', 'HALO'], sc1=True) + self.fills(1, ['KVP', 'KVF', 'HALO'], sc1=True)
        else:
            fl = self.fills(1, ['X2'])
        side, pre = self.start_phase(act(ly, 'X'), statbase=stat(ly, 0), checked=(ly > 0), fills=fl)
        self.chunk(fb + FB_K, 5, 5, A5, side=side, pre=pre, extra_after_bar=self.stat_reads(), endbar=True, name=f'{N}.K')
        for x in self.cs_reads(vS[0], vCS80, 4 * CS_K, 5): e(x)
        for x in self.stat_finish(): e(x)
        self.center(S3, vS[0], 20); self.scale(S3, S3, vR, 20)
        self.tick(f'{N}.K.ln')
        self.phi(vR1)
        for k in range(5): e(f'ds_write_b128 v{vKTW}, v[{vR1 + 4 * k}:{vR1 + 4 * k + 3}] offset:{16 * k}')
        self.tick(f'{N}.K.done')
        self.flush()
        side = {}
        if ly == 0:
            side = {70: ['@wait_tag fill'],
                    95: [f'v_mov_b32 v{vK}, s{sXCC}', f's_lshl_b32 s{sFT}, s{sRB}, 3', f's_add_u32 s{sFT}, s{sFT}, s{sCS}', f's_lshl_b32 s{sFT}, s{sFT}, 6',
                         f's_add_u32 s{sFT}, s{sFT}, {WS_ID}', f'v_mov_b32 v{vK + 1}, 0',
                         f'buffer_store_dword v{vK}, v{vK + 1}, {WSR}, s{sFT} offen sc1']}
        self.chunk(fb + FB_V, 5, 5, A5, side=side, name=f'{N}.V')
        for x in self.cs_reads(vS[0], vCS80, 4 * CS_V, 5): e(x)
        self.center(S3, vS[0], 20); self.scale(S3, S3, vR, 20)
        self.pack(vS[0], S3, 20)
        e(f'v_mov_b32 v{vS[0] + 10}, 0x3f80'); e(f'v_mov_b32 v{vS[0] + 11}, 0')
        for k in range(3): e(f'ds_write_b128 v{vKTW}, v[{vS[0] + 4 * k}:{vS[0] + 4 * k + 3}] offset:{80 + 16 * k}')
        e(f'v_and_b32 v{vX + 4}, 7, v0')
        e(f'v_lshrrev_b32 v{vX + 5}, 4, v0')
        e(f'v_lshlrev_b32 v{vX + 4}, 4, v{vX + 4}')
        e(f'v_lshl_add_u32 v{vX + 1}, v{vX + 5}, 7, v{vX + 4}')
        e(f'v_mov_b32 v{vX + 6}, 0x80000000')
        e(f'v_and_b32 v{vX + 4}, 8, v0')
        e(f'v_cmp_ne_u32 vcc, 0, v{vX + 4}')
        e(f'v_cndmask_b32 v{vX + 1}, v{vX + 6}, v{vX + 1}, vcc')
        e(f'v_cmp_gt_u32 vcc, 32, v0')
        e(f'v_cndmask_b32 v{vX + 2}, v{vX + 6}, v{vL16}, vcc')
        e(f'v_cndmask_b32 v{vX + 3}, v{vX + 6}, v{vX + 1}, vcc')
        e('@wait_lds'); e('s_barrier')
        self.tick(f'{N}.V.done')
        Dv = vS[2]
        for st in range(2):
            for k, c0 in enumerate((0, 16, 32, 40, 48)):
                b = vS[st] + 4 * k
                for hf in range(2):
                    e(f'ds_read_b64_tr_b16 v[{b + 2 * hf}:{b + 2 * hf + 1}], v{vKTR} offset:{(st * 32 + hf * 4) * 144 + 2 * c0}')
        for st in range(2):
            for a in range(3):
                for b in range(2):
                    d = Dv + 4 * (2 * a + b)
                    c = '0' if st == 0 else f'v[{d}:{d + 3}]'
                    fa = vS[st] + 4 * a; fbb = vS[st] + 12 + 4 * b
                    e(f'v_mfma_f32_16x16x32_bf16 v[{d}:{d + 3}], v[{fa}:{fa + 3}], v[{fbb}:{fbb + 3}], {c}')
        e(f's_add_u32 s{sTMP}, s{sKVPS}, {WS_KVP + ly * KVP_LAYER}')
        for a in range(3):
            for b in range(2):
                d = Dv + 4 * (2 * a + b)
                self.sanitize([d])
                va = [[vL16, vX + 1], [vL16, vX + 1], [vX + 2, vX + 3]][a][b]
                e(f'buffer_store_dwordx4 v[{d}:{d + 3}], v{va}, {WSR}, s{sTMP} offen offset:{1024 * a if b == 0 else 2560 + 512 * a} sc1')
        self.tick(f'{N}.kvp_sent')
        self.flush()
        self.chunk(fb + FB_Q, 5, 5, A5, name=f'{N}.Q')
        for x in self.cs_reads(vS[0], vCS80, 4 * CS_Q, 5): e(x)
        e('@nopf_on')
        if ly == 0:
            e(f'v_lshlrev_b32 v{vA + 16}, 6, v0')
            e(f'v_and_b32 v{vA + 17}, 7, v0')
            e(f'v_lshlrev_b32 v{vA + 17}, 6, v{vA + 17}')
            e(f's_lshl_b32 s{sFT}, s{sRB}, 9')
            e(f's_add_u32 s{sFT}, s{sFT}, {WS_ID}')
            Li = self.lab('idp'); Ld = self.lab('idd')
            e('@wait_vm')
            e(f'{Li}:')
            for t in range(4):
                e(f's_mov_b32 s{sTMP}, {WS_ID + 4096 * t}')
                e(f'buffer_load_dword v{vA + t}, v{vA + 16}, {WSR}, s{sTMP} offen sc1')
            e(f'buffer_load_dword v{vA + 4}, v{vA + 17}, {WSR}, s{sFT} offen sc1')
            e('s_waitcnt vmcnt(0)')
            e(f'v_min3_u32 v{vA}, v{vA}, v{vA + 1}, v{vA + 2}')
            e(f'v_min3_u32 v{vA}, v{vA}, v{vA + 3}, v{vA + 4}')
            e(f'v_cmp_eq_u32 vcc, 0, v{vA}')
            e(f's_cbranch_vccz {Ld}')
            e(f's_sub_u32 s{sTO}, s{sTO}, 1')
            e(f's_cbranch_scc0 {Li}')
            e(f's_mov_b32 s{sTO}, 0')
            e(f'{Ld}:')
            e(f'v_cmp_ne_u32 vcc, s{sXCC}, v{vA + 4}')
            e(f's_cmp_eq_u64 vcc, 0')
            e(f's_cselect_b32 s{sMODE}, 1, 0')
        e(f'v_lshrrev_b32 v{vA + 16}, 3, v0')
        e(f'v_mul_u32_u24 v{vA + 16}, {4 * 3840}, v{vA + 16}')
        e(f'v_and_b32 v{vA + 17}, 7, v0')
        e(f'v_lshl_add_u32 v{vA + 16}, v{vA + 17}, 4, v{vA + 16}')
        e(f's_cmp_lt_u32 s{sRB}, 30')
        e(f's_cselect_b32 s{sTMP}, 0, 0x80000000')
        e(f'v_or_b32 v{vA + 16}, s{sTMP}, v{vA + 16}')
        kl = [f's_add_u32 s{sTMP2}, s{sKVPL}, {WS_KVP + ly * KVP_LAYER + 3840 * t}\n'
              f'buffer_load_dwordx4 v[{vA + 4 * t}:{vA + 4 * t + 3}], v{vA + 16}, {WSR}, s{sTMP2} offen sc1' for t in range(4)]
        for x in kl: e(x)
        if ly == 0: self.emit_items(self.fills(0, ['X2']))
        self.center(S3, vS[0], 20); self.scale(S3, S3, vR, 20)
        self.tick(f'{N}.Q.ln')
        for x in self.check([vA + 4 * t for t in range(4)], kl): e(x)
        self.tick(f'{N}.kv1_ready')
        for k in (0, 2):
            e(f'v_pk_add_f32 v[{vA + k}:{vA + k + 1}], v[{vA + k}:{vA + k + 1}], v[{vA + 4 + k}:{vA + 5 + k}]')
            e(f'v_pk_add_f32 v[{vA + 8 + k}:{vA + 9 + k}], v[{vA + 8 + k}:{vA + 9 + k}], v[{vA + 12 + k}:{vA + 13 + k}]')
        for k in (0, 2):
            e(f'v_pk_add_f32 v[{vA + k}:{vA + k + 1}], v[{vA + k}:{vA + k + 1}], v[{vA + 8 + k}:{vA + 9 + k}]')
        for k in range(4):
            e(f'v_add_f32_dpp v{vA + 4 + k}, v{vA + k}, v{vA + k} row_ror:8 row_mask:0xf bank_mask:0xf')
        for swap in (16, 32):
            for k in range(4): e(f'v_mov_b32 v{vA + k}, v{vA + 4 + k}')
            for k in range(4): e(f'v_permlane{swap}_swap_b32 v{vA + k}, v{vA + 4 + k}')
            for k in range(4): e(f'v_add_f32 v{vA + 4 + k}, v{vA + k}, v{vA + 4 + k}')
        self.pack(vA, vA + 4, 4)
        self.sanitize([vA])
        e(f'v_lshlrev_b32 v{vA + 17}, 3, v0')
        e(f'v_mov_b32 v{vA + 18}, 0x80000000')
        e(f'v_cmp_gt_u32 vcc, 8, v0')
        e(f'v_cndmask_b32 v{vA + 17}, v{vA + 18}, v{vA + 17}, vcc')
        e(f's_add_u32 s{sTMP}, s{sKVFS}, {WS_KVF + ly * KVF_LAYER}')
        e(f'buffer_store_dwordx2 v[{vA}:{vA + 1}], v{vA + 17}, {WSR}, s{sTMP} offen sc1')
        self.tick(f'{N}.kvf_sent')
        e('@pf_burst 4')
        self.phi(vR1)
        self.tick(f'{N}.Q.done')
        ga, l0, l2, l3, ga3 = vA + 8, vA + 9, vA + 10, vA + 11, vA + 12
        q, ee, t1 = vA + 13, vA + 14, vA + 15
        e(f'v_lshrrev_b32 v{q}, 3, v0')
        e(f'v_and_b32 v{ee}, 7, v0')
        e(f'v_lshlrev_b32 v{ga}, 3, v{ee}')
        e(f'v_lshl_add_u32 v{ga}, v{q}, 7, v{ga}')
        e(f'v_mov_b32 v{t1}, 0x80000000')
        e(f'v_cmp_gt_u32 vcc, 48, v0')
        e(f'v_cndmask_b32 v{ga3}, v{t1}, v{ga}, vcc')
        fl_ = [f's_add_u32 s{sTMP2}, s{sKVFL}, {WS_KVF + ly * KVF_LAYER}\n'
               f'buffer_load_dwordx2 v[{vA + 2 * t}:{vA + 2 * t + 1}], v{ga3 if t == 3 else ga}, {WSR}, s{sTMP2} offen offset:{1024 * t} sc1' for t in range(4)]
        for x in self.dedup(fl_): e(x)
        e(f's_lshl_b32 s{sTMP}, s{sWV}, 11')
        e(f's_add_u32 s{sTMP}, s{sTMP}, {L_KVF}')
        e(f'v_and_b32 v{l0}, 15, v0')
        e(f'v_mul_u32_u24 v{l0}, 80, v{l0}')
        e(f'v_lshrrev_b32 v{t1}, 4, v0')
        e(f'v_lshl_add_u32 v{l0}, v{t1}, 3, v{l0}')
        e(f'v_add_u32 v{l0}, s{sTMP}, v{l0}')
        e(f'v_mul_u32_u24 v{l3}, 80, v{ee}')
        e(f'v_lshl_add_u32 v{l3}, v{q}, 3, v{l3}')
        e(f'v_add_u32 v{l3}, s{sTMP}, v{l3}')
        e(f'v_add_u32 v{l2}, {1280 - 32}, v{l3}')
        e(f'v_add_u32 v{l3}, {1280 + 32}, v{l3}')
        e(f'v_mov_b32 v{t1}, s{sTMP}')
        e(f'v_add_u32 v{t1}, 1984, v{t1}')
        e(f'v_cndmask_b32 v{l3}, v{t1}, v{l3}, vcc')
        e(f'v_add_u32 v{t1}, 64, v{l0}')
        e(f'v_cmp_gt_u32 vcc, 32, v0')
        e(f'v_cndmask_b32 v{l2}, v{l2}, v{t1}, vcc')
        for x in self.check([vA + 2 * t for t in range(4)], self.dedup(fl_)): e(x)
        self.tick(f'{N}.kv2_ready')
        e(f'ds_write_b64 v{l0}, v[{vA}:{vA + 1}]')
        e(f'ds_write_b64 v{l0}, v[{vA + 2}:{vA + 3}] offset:32')
        e(f'ds_write_b64 v{l2}, v[{vA + 4}:{vA + 5}]')
        e(f'ds_write_b64 v{l3}, v[{vA + 6}:{vA + 7}]')
        e('@pf_burst 4')
        e('@wait_lds'); e('s_barrier')
        order = [(j, i) for i in range(5) for j in range(6)]
        nb = 15; fr = vA + 16
        def rd(n):
            j, i = order[n]; b = fr + 4 * (n % nb)
            e(f'ds_read_b128 v[{b}:{b + 3}], v{vBDK} offset:{320 * j + 16 * i}')
        for n in range(nb): rd(n)
        O = vS[2]
        for n, (j, i) in enumerate(order):
            b = fr + 4 * (n % nb); d = O + 4 * j
            c = '0' if i == 0 else f'v[{d}:{d + 3}]'
            e(f'v_mfma_f32_16x16x32_bf16 v[{d}:{d + 3}], v[{b}:{b + 3}], v[{vR1 + 4 * i}:{vR1 + 4 * i + 3}], {c}')
            if n + nb < 30: rd(n + nb)
        e(f'v_add_f32 v{vX}, {f32(1e-6)}, v{O + 20}')
        e(f'v_rcp_f32 v{vX}, v{vX}')
        self.scale(O, O, vX, 20)
        self.out_x(O, act(ly, 'O'))
        self.tick(f'{N}.o_sent')
        self.flush()
        side, pre = self.start_phase(act(ly, 'O'), fills=self.fills(ly, ['H']))
        self.chunk(fb + FB_WO, 5, 5, A5, cinit=vR0, side=side, pre=pre, name=f'{N}.WO')
        self.out_x(S3, act(ly, 'X2'), stat(ly, 1))
        self.tick(f'{N}.x2_sent')
        mv = [f'v_mov_b32 v{vR0 + k}, v{S3 + k}' for k in range(20)]
        side, pre = self.start_phase(act(ly, 'X2'), statbase=stat(ly, 1), fills=self.fills(ly, ['X1']))
        for x in mv: e(x)
        self.chunk(fb + FB_W1, 5, 5, A5, side=side, pre=pre, extra_after_bar=self.stat_reads(), name=f'{N}.W1')
        for x in self.cs_reads(vS[0], vCS80, 4 * CS_W1, 5): e(x)
        for x in self.stat_finish(): e(x)
        e(f'v_mul_f32 v{vT}, v{vR}, v{vR}')
        e(f'v_mov_b32 v{vX + 6}, {f32(EPS)}')
        e(f'v_fma_f32 v{vT}, v{vT}, v{vMean + 1}, v{vX + 6}')
        e(f'v_rsq_f32 v{vT}, v{vT}')
        e(f'v_mul_f32 v{vT}, v{vT}, v{vR}')
        self.gelu_consts(vT)
        self.center(S3, vS[0], 20)
        self.gelu(S3, vS[1], 20, vX, vX + 2, vX + 4, quiet=True)
        self.out_x(S3, act(ly, 'H'))
        self.emit_items([self.put(self.x_stores(vS[0], act(ly, 'H'), soff=sHALO, v16=vHS16, v8=vHS8), sc1=True)])
        self.tick(f'{N}.h_sent')
        self.flush()
        side, pre = self.start_phase(act(ly, 'H'), halo=True, fills=self.fills(ly, ['H3']))
        for k in range(0, 20, 2):
            e(f'v_pk_add_f32 v[{vR1 + k}:{vR1 + k + 1}], v[{vR0 + k}:{vR0 + k + 1}], v[{vMean}:{vMean + 1}] op_sel_hi:[1,0] neg_lo:[0,1] neg_hi:[0,1]')
        self.scale(vR1, vR1, vR, 20)
        self.chunk(fb + FB_W2, 5, 5, A5, cinit=vR1, side=side, pre=pre, name=f'{N}.W2')
        self.out_x(S3, act(ly, 'X1'), stat(ly, 2))
        self.tick(f'{N}.x1_sent')
        for c in range(3):
            if c == 0:
                side, pre = self.start_phase(act(ly, 'X1'), statbase=stat(ly, 2), per=20, fills=self.fills(1, ['X', 'O']) if ly == 0 else None)
                for k in range(0, 20, 2):
                    e(f'v_pk_add_f32 v[{vR0 + k}:{vR0 + k + 1}], v[{vR0 + k}:{vR0 + k + 1}], v[{S3 + k}:{S3 + k + 1}]')
                self.chunk(fb + FB_W3, 4, 5, A5, side=side, pre=pre, extra_after_bar=self.stat_reads(), endbar=True, name=f'{N}.W3a')
                for x in self.stat_finish(): e(x)
                self.gelu_consts(vR)
            else:
                self.chunk(fb + FB_W3 + 20 * c, 4, 5, A5, endbar=(c < 2))
            for x in self.cs_reads(vS[0], vCS192, 64 * c, 4): e(x)
            self.center(S3, vS[0], 16)
            self.gelu(S3, vS[1], 16, vX, vX + 2, vX + 4, quiet=(c == 2))
            self.pack(vS[0], S3, 16)
            self.sanitize([vS[0], vS[0] + 4])
            e('@wait_tag fill')
            self.emit_items([self.put(self.h3_stores(vS[0], act(ly, 'H3'), c))])
            self.tick(f'{N}.h3_sent{c}')
        self.flush()
        b3 = act(ly, 'H3')
        A6 = lambda ps, s: vA + 24 * ps + 4 * s
        e('@pf_need')
        e('@nopf_on')
        e('@hold_on')
        for gq in (0, 1):
            for x in self.dedup(self.a3_loads(gq, b3)): e(x)
        e('s_barrier')
        for half in range(2):
            side = {}; pre = {}
            for ps in range(4):
                gq = half * 4 + ps + 2
                if gq < 8:
                    for k, x in enumerate(self.a3_loads(gq, b3)):
                        side.setdefault(ps * 30 + k * 4, []).append(x)
                g0 = half * 4 + ps
                c = self.check(self.a3_chk(g0), self.dedup(self.a3_loads(g0, b3)), self.dedup(self.a3_loads(1, b3)) if g0 == 0 else None)
                if ps == 0: pre[0] = c + ['@hold_off']
                else:
                    for k, x in enumerate(c[:-1]): side.setdefault(ps * 30 - 1 - (len(c) - 2 - k) // 2, []).append(x)
                    pre[ps * 30] = [c[-1]]
            if half == 1:
                side.setdefault(55, []).append('@nopf_off')
            self.chunk(fb + FB_W4 + 30 * half, 5, 6, A6, cinit=vR0, side=side, pre=pre, first=(half == 0), last=(half == 1), name=f'{N}.W4{half}')
        if ly == 0:
            self.out_x(S3, act(1, 'X'), stat(1, 0))
            for k in range(0, 20, 2): e(f'v_mov_b64 v[{vR0 + k}:{vR0 + k + 1}], v[{S3 + k}:{S3 + k + 1}]')
            self.tick(f'{N}.x_sent')
            self.flush()
        else:
            self.pack(vS[0], S3, 20)
            e(f's_lshl_b32 s{sTMP}, s{sRB}, 2')
            e(f's_add_u32 s{sTMP}, s{sTMP}, s{sWV}')
            e(f's_mul_i32 s{sTMP}, s{sTMP}, {16 * 1280}')
            e(f's_mul_i32 s{sTMP2}, s{sCS}, 160')
            e(f's_add_u32 s{sTMP}, s{sTMP}, s{sTMP2}')
            e(f'v_and_b32 v{vX}, 15, v0')
            e(f'v_lshrrev_b32 v{vX + 1}, 4, v0')
            e(f'v_mul_u32_u24 v{vX}, 1280, v{vX}')
            e(f'v_mad_u32_u24 v{vX}, v{vX + 1}, 40, v{vX}')
            O_ = f's[{sOUT}:{sOUT + 3}], s{sTMP} offen'
            e(f'buffer_store_dwordx4 v[{vS[0]}:{vS[0] + 3}], v{vX}, {O_}')
            e(f'buffer_store_dwordx4 v[{vS[0] + 4}:{vS[0] + 7}], v{vX}, {O_} offset:16')
            e(f'buffer_store_dwordx2 v[{vS[0] + 8}:{vS[0] + 9}], v{vX}, {O_} offset:32')
            self.tick(f'{N}.end')
            self.flush()

COST = {'mfma': 16, 'valu': 5, 'trans': 8, 'salu': 4, 'dsr': 8, 'dsw': 14, 'vld': 8, 'vst': 8, 'smem': 4, 'wait': 4, 'nop': 4, 'barrier': 20, 'branch': 4, 'label': 0, 'pseudo': 0}

def prefetch_pass(ins, total):
    first = {}; last = {}
    for pos, i in enumerate(ins):
        if i.meta and i.meta[0] == 'W':
            first.setdefault(i.meta[1], pos); last[i.meta[1]] = pos
    out = []; n = 0; t = 0; tl = -10**9; allow = False; hold = False; curbase = None; free_valu = 0
    def issue(n):
        nonlocal curbase
        idx = n % NFRAG
        base = (idx >> 2) * 4096
        if base != curbase:
            out.append(I(f's_mov_b32 s{sWO}, {WS_W + base}')); curbase = base
        sl = 4 * (n % POOL)
        out.append(I(f'buffer_load_dwordx4 a[{sl}:{sl + 3}], v{vW}, {WSR}, s{sWO} offen offset:{(idx & 3) * 1024}'))
    free = lambda n, pos: n < total and (n < POOL or last[n - POOL] < pos)
    forced = []; needed = []
    for pos, i in enumerate(ins):
        if i.kind == 'pseudo':
            a = i.op.split()
            if a[0] == '@nopf_on': allow = False; continue
            if a[0] == '@nopf_off': allow = True; continue
            if a[0] == '@hold_on': hold = True; continue
            if a[0] == '@hold_off': hold = False; continue
            if a[0] == '@time': t += int(a[1]); continue
            if a[0] == '@entry_loads':
                for _ in range(8): issue(n); n += 1
                allow = True; tl = t; continue
            if a[0] == '@pf_need':
                nxt = min(g for g, fp in first.items() if fp > pos)
                while n < nxt + NEED and free(n, pos): issue(n); needed.append(n); n += 1; tl = t; t += 64
                continue
            if a[0] == '@pf_burst':
                for _ in range(int(a[1])):
                    if free(n, pos): issue(n); n += 1; tl = t
                continue
        if i.meta and i.meta[0] == 'W':
            while n <= i.meta[1]:
                assert free(n, pos), (n, pos)
                issue(n); forced.append(n); n += 1; tl = t
            if first[i.meta[1]] == pos and not hold:
                while n < i.meta[1] + LOOK and free(n, pos): issue(n); needed.append(n); n += 1; tl = t
        if allow and not hold and t - tl >= PACE and free(n, pos) and i.kind not in ('branch', 'label'):
            issue(n); n += 1; tl = t
        out.append(i)
        if i.kind in ('vld', 'vst'): tl = t
        c = COST[i.kind]
        if i.kind == 'mfma': free_valu = 8
        elif free_valu > 0 and i.kind != 'pseudo':
            d = min(c, free_valu); free_valu -= d; c -= d
        t += c
    assert n == total, n
    return out, (forced, len(needed)), t

def main_kernel(name, stamps=False):
    g = Gen(stamps)
    g.prologue()
    g.layer(0)
    g.layer(1)
    g.e('L_main_exit:')
    g.e('s_endpgm')
    ins, forced, t = prefetch_pass(g.p.ins, 2 * NFRAG)
    ins = insert_nops(insert_waits(ins))
    info = dict(n=len(ins), forced=forced, est=t, stamps=list(g.stamp_names))
    return f'{name}:\n' + render(ins) + '\n' + '\n'.join(g.ool) + '\n', info
```

```python
from asmgen import *
from layout import *

PREP_BLOCK = 320
N_SW = 228
N_XW = 205
PREP_GRID = N_SW + N_XW
PREP_LDS = 40 * 128

def vdiv(p, dst, src, div, maxval):
    mul, sh = magic(div, maxval)
    p.e(f'v_mul_u32_u24 v{dst}, {mul}, v{src}')
    p.e(f'v_lshrrev_b32 v{dst}, {sh}, v{dst}')

def vrem(p, dst, src, quo, div):
    p.e(f'v_mul_u32_u24 v{dst}, {div}, v{quo}')
    p.e(f'v_sub_u32 v{dst}, v{src}, v{dst}')

def swizzle_role(kind):
    p = Prog()
    p.e('v_and_b32 v1, 7, v0')
    p.e('v_lshrrev_b32 v2, 3, v0')
    p.e('s_lshl_b32 s18, s13, 3')
    p.e('v_add_u32 v3, s18, v1')
    if kind == 'w3':
        vdiv(p, 4, 3, 48, 383); vrem(p, 7, 3, 4, 48)
        vdiv(p, 5, 7, 12, 47); vrem(p, 6, 7, 5, 12)
        p.e('v_lshrrev_b32 v7, 2, v6')
        p.e('v_mul_u32_u24 v7, 20, v7')
        p.e('v_and_b32 v6, 3, v6')
        p.e('v_mad_u32_u24 v6, v6, 5, v7')
    else:
        vdiv(p, 4, 3, 20, 159); vrem(p, 7, 3, 4, 20)
        vdiv(p, 5, 7, 5, 19); vrem(p, 6, 7, 5, 5)
        p.e(f'v_mul_u32_u24 v6, {6 if kind == "w4" else 5}, v6')
    p.e('v_lshlrev_b32 v8, 3, v3')
    p.e('v_add_u32 v8, s14, v8')
    p.e(f'v_mul_u32_u24 v9, {4 * NFRAG}, v4')
    p.e('v_add3_u32 v9, v9, v6, s15')
    p.e('v_lshlrev_b32 v9, 10, v9')
    p.e('v_lshl_add_u32 v9, v5, 6, v9')
    if kind == 'w4':
        p.e('v_cmp_gt_u32 vcc, 32, v2')
        p.e('s_lshl_b32 s18, s17, 6')
    for u in range(2):
        b = 16 + u * 8
        o, w, s, gk, r0, r1, dst = b, b + 1, b + 2, b + 3, b + 4, b + 5, b + 6
        if kind == 'w4':
            p.e(f'v_add_u32 v{o}, s18, v2')
            if u: p.e(f'v_add_u32 v{o}, 32, v{o}')
            vdiv(p, w, o, 48, 255); vrem(p, s, o, w, 48)
            p.e(f'v_and_b32 v{gk}, 3, v{o}')
            p.e(f'v_lshrrev_b32 v{s}, 2, v{s}')
            vdiv(p, r1, s, 6, 11)
            p.e(f'v_mul_u32_u24 v{dst}, 24, v{r1}')
            p.e(f'v_mul_u32_u24 v{r0}, 384, v{w}')
            p.e(f'v_mul_u32_u24 v{r1}, 144, v{r1}')
            p.e(f'v_add_u32 v{r0}, v{r0}, v{r1}')
            p.e(f'v_mul_u32_u24 v{r1}, 48, v{gk}')
            p.e(f'v_add_u32 v{r0}, v{r0}, v{r1}')
            p.e(f'v_lshl_add_u32 v{r0}, v{s}, 3, v{r0}')
            p.e(f'v_add_u32 v{r1}, 4, v{r0}')
            p.e(f'v_add_u32 v{s}, v{s}, v{dst}')
        else:
            p.e(f'v_add_u32 v{o}, {40 * u}, v2')
            vdiv(p, w, o, 20, 79); vrem(p, s, o, w, 20)
            p.e(f'v_and_b32 v{gk}, 3, v{o}')
            p.e(f'v_lshrrev_b32 v{s}, 2, v{s}')
            p.e(f'v_mul_u32_u24 v{r0}, 160, v{w}')
            p.e(f'v_mul_u32_u24 v{r1}, 20, v{gk}')
            p.e(f'v_add_u32 v{r0}, v{r0}, v{r1}')
            p.e(f'v_lshl_add_u32 v{r0}, v{s}, 3, v{r0}')
            p.e(f'v_cmp_lt_u32 s[24:25], 2, v{s}')
            p.e(f'v_cndmask_b32 v{r1}, 0, 56, s[24:25]')
            p.e(f'v_add_u32 v{r0}, v{r0}, v{r1}')
            p.e(f'v_cmp_eq_u32 s[24:25], 2, v{s}')
            p.e(f'v_mov_b32 v{r1}, 80')
            p.e(f'v_cndmask_b32 v{r1}, 4, v{r1}, s[24:25]')
            p.e(f'v_add_u32 v{r1}, v{r0}, v{r1}')
        p.e(f'v_mul_lo_u32 v{r0}, v{r0}, s12')
        p.e(f'v_mul_lo_u32 v{r1}, v{r1}, s12')
        p.e(f'v_add_u32 v{r0}, v{r0}, v8')
        p.e(f'v_add_u32 v{r1}, v{r1}, v8')
        p.e(f'v_mul_u32_u24 v{dst}, {NFRAG}, v{w}')
        p.e(f'v_add_lshl_u32 v{dst}, v{dst}, v{s}, 10')
        p.e(f'v_lshl_add_u32 v{dst}, v{gk}, 8, v{dst}')
        p.e(f'v_add_u32 v{dst}, v{dst}, v9')
        if kind == 'w4':
            p.e(f'v_mov_b32 v{o}, 0x80000000')
            p.e(f'v_cndmask_b32 v{r0}, v{o}, v{r0}, vcc')
            p.e(f'v_cndmask_b32 v{r1}, v{o}, v{r1}, vcc')
            p.e(f'v_cndmask_b32 v{dst}, v{o}, v{dst}, vcc')
    p.e('s_mov_b32 s26, 0')
    p.e('s_mov_b32 s27, s12')
    p.e('s_lshl_b32 s28, s12, 1')
    p.e('s_add_u32 s29, s28, s12')
    for u in range(2):
        b = 16 + u * 8
        for e in range(8):
            L = 32 + u * 16 + e * 2
            p.e(f'buffer_load_dwordx2 v[{L}:{L + 1}], v{b + 4 + (e >> 2)}, s[8:11], s{26 + (e & 3)} offen')
    p.e('s_mov_b32 s30, 0x05040100')
    p.e('s_mov_b32 s31, 0x07060302')
    for u in range(2):
        b = 16 + u * 8
        for c in range(4):
            O = 64 + u * 16 + c * 4
            for pr in range(4):
                lo = 32 + u * 16 + (2 * pr) * 2 + (c >> 1); hi = lo + 2
                p.e(f'v_perm_b32 v{O + pr}, v{hi}, v{lo}, s{30 + (c & 1)}')
            p.e(f'buffer_store_dwordx4 v[{O}:{O + 3}], v{b + 6}, s[20:23], 0 offen offset:{16 * c}')
    if kind != 'w4':
        lab = f'L_prep_nocs_{kind}'
        p.e('s_cmp_eq_u32 s16, -1')
        p.e(f's_cbranch_scc1 {lab}')
        for c in range(4): p.e(f'v_mov_b32 v{96 + c}, 0')
        for k in range(16):
            for hf in range(2):
                L = 32 + k * 2 + hf
                p.e(f'v_lshlrev_b32 v100, 16, v{L}')
                p.e(f'v_and_b32 v101, 0xffff0000, v{L}')
                p.e(f'v_add_f32 v{96 + 2 * hf}, v{96 + 2 * hf}, v100')
                p.e(f'v_add_f32 v{97 + 2 * hf}, v{97 + 2 * hf}, v101')
        p.e('v_lshlrev_b32 v102, 4, v0')
        p.e('ds_write_b128 v102, v[96:99]')
        p.e('@wait_lds')
        p.e('s_barrier')
        p.e('v_and_b32 v103, 31, v0')
        p.e('v_lshlrev_b32 v102, 2, v103')
        for k in range(40): p.e(f'ds_read_b32 v{104 + k}, v102 offset:{128 * k}')
        for k in range(1, 40): p.e(f'v_add_f32 v104, v104, v{104 + k}')
        width = 192 if kind == 'w3' else 80
        p.e('s_lshl_b32 s18, s13, 5')
        p.e('v_add_u32 v103, s18, v103')
        vdiv(p, 105, 103, width, 1535 if kind == 'w3' else 639)
        p.e(f'v_mul_u32_u24 v105, {512 - width}, v105')
        p.e('v_add3_u32 v103, v103, v105, s16')
        p.e('v_lshlrev_b32 v103, 2, v103')
        p.e('v_mov_b32 v105, 0x80000000')
        p.e('v_cmp_gt_u32 vcc, 32, v0')
        p.e('v_cndmask_b32 v103, v105, v103, vcc')
        p.e(f's_mov_b32 s18, {WS_CSUM}')
        p.e('buffer_store_dword v104, v103, s[20:23], s18 offen')
        p.e(f'{lab}:')
    p.e('s_endpgm')
    return finalize(p)

def stats_reduce(p, a, b, t):
    p.e(f'v_permlane16_swap_b32 v{a}, v{b}')
    p.e(f'v_add_f32 v{a}, v{a}, v{b}')
    p.e(f'v_mov_b32 v{t}, v{a}')
    p.e(f'v_permlane32_swap_b32 v{a}, v{t}')
    p.e(f'v_add_f32 v{a}, v{a}, v{t}')

def x_role():
    p = Prog()
    p.e('v_lshrrev_b32 v1, 6, v0')
    p.e('s_mul_i32 s17, s16, 5')
    p.e('v_add_u32 v1, s17, v1')
    p.e('v_and_b32 v2, 63, v0')
    p.e('v_and_b32 v3, 15, v2')
    p.e('v_lshrrev_b32 v4, 4, v2')
    p.e('v_lshrrev_b32 v5, 3, v1')
    p.e('v_and_b32 v6, 7, v1')
    p.e('v_lshl_add_u32 v7, v5, 4, v3')
    p.e('v_mul_u32_u24 v7, 1280, v7')
    p.e('v_mul_u32_u24 v8, 160, v6')
    p.e('v_mul_u32_u24 v9, 40, v4')
    p.e('v_add3_u32 v7, v7, v8, v9')
    p.e('buffer_load_dwordx4 v[16:19], v7, s[8:11], 0 offen')
    p.e('buffer_load_dwordx4 v[20:23], v7, s[8:11], 0 offen offset:16')
    p.e('buffer_load_dwordx2 v[24:25], v7, s[8:11], 0 offen offset:32')
    p.e(f's_mul_i32 s17, s16, {PREP_BLOCK}')
    p.e('v_add_u32 v30, s17, v0')
    p.e('v_min_u32 v31, 8191, v30')
    vdiv(p, 32, 31, 12, 8191); vrem(p, 33, 31, 32, 12)
    vdiv(p, 34, 32, 20, 700); vrem(p, 35, 32, 34, 20)
    p.e('v_mul_u32_u24 v34, 800, v34')
    p.e('v_mul_u32_u24 v36, 80, v33')
    p.e('v_lshl_add_u32 v34, v35, 1, v34')
    p.e('v_add_u32 v34, v34, v36')
    p.e('v_mov_b32 v37, 0x80000000')
    p.e('v_cmp_gt_u32 vcc, 10, v33')
    p.e('v_cndmask_b32 v34, v37, v34, vcc')
    p.e('buffer_load_ushort v38, v34, s[12:15], 0 offen')
    p.e('buffer_load_ushort v39, v34, s[12:15], 0 offen offset:40')
    p.e('v_lshlrev_b32 v40, 2, v30')
    p.e(f'v_cmp_gt_u32 vcc, {256 * 16}, v30')
    p.e('v_cndmask_b32 v41, v37, v40, vcc')
    p.e('v_mov_b32 v42, 0')
    p.e(f's_mov_b32 s18, {WS_ID}')
    p.e('buffer_store_dword v42, v41, s[20:23], s18 offen')
    p.e('v_mul_u32_u24 v10, 2560, v1')
    p.e('v_cmp_gt_u32 vcc, 1024, v1')
    p.e('v_cndmask_b32 v10, v37, v10, vcc')
    p.e('v_lshl_add_u32 v11, v2, 4, v10')
    p.e('v_lshl_add_u32 v12, v2, 3, v10')
    p.e(f's_mov_b32 s18, {act(0, "X")}')
    p.e('buffer_store_dwordx4 v[16:19], v11, s[20:23], s18 offen')
    p.e('buffer_store_dwordx4 v[20:23], v11, s[20:23], s18 offen offset:1024')
    p.e('buffer_store_dwordx2 v[24:25], v12, s[20:23], s18 offen offset:2048')
    p.e('v_mov_b32 v44, 0')
    p.e('v_mov_b32 v45, 0')
    for k in range(10):
        p.e(f'v_lshlrev_b32 v46, 16, v{16 + k}')
        p.e(f'v_and_b32 v47, 0xffff0000, v{16 + k}')
        p.e('v_add_f32 v44, v44, v46')
        p.e('v_fmac_f32 v45, v46, v46')
        p.e('v_add_f32 v44, v44, v47')
        p.e('v_fmac_f32 v45, v47, v47')
    stats_reduce(p, 44, 45, 46)
    p.e('v_lshrrev_b32 v47, 2, v5')
    p.e('v_lshl_add_u32 v47, v47, 3, v6')
    p.e('v_lshlrev_b32 v47, 9, v47')
    p.e('v_and_b32 v48, 3, v5')
    p.e('v_lshl_add_u32 v48, v48, 4, v3')
    p.e('v_lshl_add_u32 v47, v48, 3, v47')
    p.e('v_and_b32 v48, 1, v4')
    p.e('v_lshl_add_u32 v47, v48, 2, v47')
    p.e('v_cndmask_b32 v47, v37, v47, vcc')
    p.e(f's_mov_b32 s18, {stat(0, 0)}')
    p.e('buffer_store_dword v44, v47, s[20:23], s18 offen')
    p.e('v_lshl_or_b32 v38, v39, 16, v38')
    p.e('v_cmp_gt_u32 vcc, 7680, v30')
    p.e('v_cndmask_b32 v41, v37, v40, vcc')
    p.e(f's_mov_b32 s18, {WS_WPHI}')
    p.e('buffer_store_dword v38, v41, s[20:23], s18 offen')
    p.e('s_endpgm')
    return finalize(p)

def srd(d, ptr, size):
    return f"""  s_mov_b32 s{d}, s{ptr}
  s_and_b32 s{d + 1}, s{ptr + 1}, 0xffff
  s_mov_b32 s{d + 2}, {size}
  s_mov_b32 s{d + 3}, 0x00020000"""

def prep_kernel(name):
    mats = [
        ('wqkv', 0, 60), ('wo', 60, 20), ('w1', 80, 20), ('w2', 100, 20), ('w3', 120, 48), ('w4', 168, 60)]
    t = f"""{name}:
  s_cmp_ge_u32 s2, {PREP_GRID}
  s_cbranch_scc1 L_prep_exit
  s_load_dwordx16 s[32:47], s[0:1], 0
  s_load_dwordx8 s[48:55], s[0:1], 64
  s_waitcnt lgkmcnt(0)
{srd(20, 54, WS_SIZE)}
  s_mov_b32 s17, 0
  s_cmp_ge_u32 s2, {N_SW}
  s_cbranch_scc1 L_prep_x
  s_cmp_ge_u32 s2, 168
  s_cbranch_scc1 L_prep_w4
  s_cmp_ge_u32 s2, 120
  s_cbranch_scc1 L_prep_w3
  s_cmp_ge_u32 s2, 60
  s_cbranch_scc1 L_prep_sq
{srd(8, 34, D * 3 * D * 2)}
  s_mov_b32 s12, 3840
  s_mov_b32 s13, s2
  s_mov_b32 s14, 0
  s_mov_b32 s15, {FB_Q}
  s_mov_b32 s16, {CS_Q}
  s_cmp_lt_u32 s2, 20
  s_cbranch_scc1 L_prep_n80
  s_sub_u32 s13, s2, 20
  s_mov_b32 s14, 1280
  s_mov_b32 s15, {FB_K}
  s_mov_b32 s16, {CS_K}
  s_cmp_lt_u32 s2, 40
  s_cbranch_scc1 L_prep_n80
  s_sub_u32 s13, s2, 40
  s_mov_b32 s14, 2560
  s_mov_b32 s15, {FB_V}
  s_mov_b32 s16, {CS_V}
  s_branch L_prep_n80
L_prep_sq:
  s_mov_b32 s12, 1280
  s_mov_b32 s14, 0
{srd(8, 38, D * D * 2)}
  s_sub_u32 s13, s2, 60
  s_mov_b32 s15, {FB_WO}
  s_mov_b32 s16, -1
  s_cmp_lt_u32 s2, 80
  s_cbranch_scc1 L_prep_n80
{srd(8, 42, D * D * 2)}
  s_sub_u32 s13, s2, 80
  s_mov_b32 s15, {FB_W1}
  s_mov_b32 s16, {CS_W1}
  s_cmp_lt_u32 s2, 100
  s_cbranch_scc1 L_prep_n80
{srd(8, 44, D * D * 2)}
  s_sub_u32 s13, s2, 100
  s_mov_b32 s15, {FB_W2}
  s_mov_b32 s16, -1
L_prep_n80:
{swizzle_role('n80')}
L_prep_w3:
{srd(8, 46, D * F * 2)}
  s_mov_b32 s12, 3072
  s_sub_u32 s13, s2, 120
  s_mov_b32 s14, 0
  s_mov_b32 s15, {FB_W3}
  s_mov_b32 s16, {CS_W3}
{swizzle_role('w3')}
L_prep_w4:
{srd(8, 48, F * D * 2)}
  s_mov_b32 s12, 1280
  s_sub_u32 s13, s2, 168
  s_mov_b32 s14, 0
  s_mov_b32 s15, {FB_W4}
  s_mov_b32 s16, -1
  s_cmp_lt_u32 s13, 20
  s_cbranch_scc1 L_prep_w4b
  s_sub_u32 s13, s13, 20
  s_mov_b32 s17, 1
  s_cmp_lt_u32 s13, 20
  s_cbranch_scc1 L_prep_w4b
  s_sub_u32 s13, s13, 20
  s_mov_b32 s17, 2
L_prep_w4b:
{swizzle_role('w4')}
L_prep_x:
{srd(8, 32, S * D * 2)}
{srd(12, 36, H * DH * DH * 2)}
  s_sub_u32 s16, s2, {N_SW}
{x_role()}
L_prep_exit:
  s_endpgm
"""
    return t
```

```python
import re

REG_RE = re.compile(r'^(-?)(?:abs\()?([vas])(\d+)\)?$')
RNG_RE = re.compile(r'^(-?)([vas])\[(\d+):(\d+)\]$')

def parse_operand(tok):
    tok = tok.strip()
    m = RNG_RE.match(tok)
    if m:
        return [(m.group(2), i) for i in range(int(m.group(3)), int(m.group(4)) + 1)]
    m = REG_RE.match(tok)
    if m:
        return [(m.group(2), int(m.group(3)))]
    if tok in ('vcc', 'exec', 'm0', 'scc'):
        return [(tok, 0)]
    if tok in ('vcc_lo', 'vcc_hi'):
        return [('vcc', 0)]
    if tok in ('exec_lo', 'exec_hi'):
        return [('exec', 0)]
    return []

TRANS = ('v_exp_f32', 'v_log_f32', 'v_rcp_f32', 'v_rsq_f32', 'v_sqrt_f32', 'v_sin_f32', 'v_cos_f32')
SCC_WRITERS = ('s_add_u32', 's_addc_u32', 's_sub_u32', 's_subb_u32', 's_add_i32', 's_sub_i32', 's_and_b32', 's_and_b64', 's_or_b32',
               's_or_b64', 's_xor_b32', 's_xor_b64', 's_lshl_b32', 's_lshr_b32', 's_lshl_b64', 's_andn2_b64', 's_andn2_b32', 's_min_u32', 's_max_u32',
               's_bfe_u32', 's_ashr_i32', 's_not_b32')

class I:
    __slots__ = ('text', 'op', 'kind', 'rd', 'wr', 'tag', 'srcc', 'srcab', 'wide', 'dpp', 'meta')
    def __init__(self, text, tag=None, meta=None):
        self.text = text
        self.tag = tag
        self.meta = meta
        self.srcc = set(); self.srcab = set(); self.wide = False; self.dpp = False
        t = text.split(';')[0].strip()
        if t.endswith(':'):
            self.op = 'label'; self.kind = 'label'; self.rd = set(); self.wr = set(); return
        if t.startswith('@'):
            self.op = t; self.kind = 'pseudo'; self.rd = set(); self.wr = set(); return
        parts = t.split(None, 1)
        op = parts[0]; self.op = op
        rest = parts[1] if len(parts) > 1 else ''
        ops = []; cur = ''; depth = 0
        for ch in rest:
            if ch in '[(': depth += 1
            if ch in '])': depth -= 1
            if ch == ',' and depth == 0:
                ops.append(cur); cur = ''
            else:
                cur += ch
        if cur.strip(): ops.append(cur)
        mods = ''
        if ops:
            last = ops[-1].strip().split(None, 1)
            ops[-1] = last[0]
            mods = last[1] if len(last) > 1 else ''
        regs = [parse_operand(o) for o in ops]
        flat = lambda L: set(r for x in L for r in x)
        rd = set(); wr = set()
        if op.startswith('v_mfma'):
            self.kind = 'mfma'; wr = flat(regs[:1]); rd = flat(regs[1:]); self.srcc = flat(regs[3:4]); self.srcab = flat(regs[1:3])
        elif op.startswith('buffer_load') or op.startswith('global_load'):
            self.kind = 'vld'
            if ' lds' in (' ' + mods) or op.startswith('global_load_lds'):
                rd = flat(regs) | {('m0', 0)}
            else:
                wr = flat(regs[:1]); rd = flat(regs[1:])
                if wr <= {('a', 252), ('a', 253), ('a', 254), ('a', 255)} and len(wr) == 1: wr = set()
        elif op.startswith('buffer_store') or op.startswith('global_store') or op.startswith('global_atomic') or op.startswith('buffer_atomic'):
            self.kind = 'vst'; rd = flat(regs)
            self.wide = op.endswith('x4') or op.endswith('x3')
            if self.wide:
                self.srcc = flat(regs[:1]) if op.startswith('buffer') else flat(regs[1:2])
        elif op.startswith('ds_read') or op.startswith('ds_bpermute') or op.startswith('ds_swizzle'):
            self.kind = 'dsr'; wr = flat(regs[:1]); rd = flat(regs[1:])
        elif op.startswith('ds_write'):
            self.kind = 'dsw'; rd = flat(regs)
            self.wide = op.endswith('b128') or op.endswith('b96')
            if self.wide: self.srcc = flat(regs[1:2])
        elif op.startswith('s_load') or op.startswith('s_memtime') or op.startswith('s_memrealtime'):
            self.kind = 'smem'; wr = flat(regs[:1]); rd = flat(regs[1:])
        elif op == 's_waitcnt':
            self.kind = 'wait'
        elif op == 's_nop':
            self.kind = 'nop'
        elif op == 's_barrier':
            self.kind = 'barrier'
        elif op.startswith('s_cbranch') or op == 's_branch' or op == 's_endpgm':
            self.kind = 'branch'
            if 'scc' in op: rd = {('scc', 0)}
            if 'vcc' in op: rd = {('vcc', 0)}
            if 'exec' in op: rd = {('exec', 0)}
        elif op.startswith('s_cmp') or op.startswith('s_bitcmp'):
            self.kind = 'salu'; rd = flat(regs); wr = {('scc', 0)}
        elif op in ('s_sleep', 's_setprio'):
            self.kind = 'salu'
        elif op.startswith('s_'):
            self.kind = 'salu'; wr = flat(regs[:1]); rd = flat(regs[1:])
            if op in SCC_WRITERS or 'saveexec' in op: wr |= {('scc', 0)}
            if 'saveexec' in op: wr |= {('exec', 0)}; rd |= {('exec', 0)}
            if op.startswith('s_cselect') or op in ('s_addc_u32', 's_subb_u32'): rd |= {('scc', 0)}
        elif op.startswith('v_'):
            base = op.replace('_e32', '').replace('_e64', '').replace('_dpp', '')
            self.kind = 'trans' if base in TRANS else 'valu'
            if 'permlane' in op and 'swap' in op:
                wr = flat(regs); rd = flat(regs)
            elif base in ('v_add_co_u32', 'v_sub_co_u32', 'v_addc_co_u32'):
                wr = flat(regs[:2]); rd = flat(regs[2:])
            else:
                wr = flat(regs[:1]); rd = flat(regs[1:])
                if base in ('v_fmac_f32', 'v_dot2c_f32_bf16', 'v_pk_fmac_f16'): rd |= wr
            if op.endswith('_dpp') or 'quad_perm' in mods or 'row_' in mods:
                self.dpp = True; rd |= wr
        else:
            raise ValueError('unknown op: ' + text)
        self.rd = rd; self.wr = wr

    def states(self):
        if self.kind in ('label', 'pseudo'): return 0
        if self.kind == 'nop': return int(self.text.split()[1]) + 1
        return 1

def is_valu(i): return i.kind in ('valu', 'trans')
def isv(r): return r[0] in ('v', 'a')

def required_gap(p, c):
    g = 0
    if is_valu(p):
        vw = {r for r in p.wr if isv(r)}
        sw = {r for r in p.wr if r[0] in ('s', 'vcc')}
        if c.kind == 'mfma' and vw & c.rd: g = max(g, 2)
        if is_valu(c):
            if c.dpp and vw & c.rd: g = max(g, 2)
            if 'permlane' in c.op and vw & c.rd: g = max(g, 2)
            if c.op.startswith('v_readfirstlane') or c.op.startswith('v_readlane'):
                if vw & c.rd: g = max(g, 1)
                if sw & c.rd: g = max(g, 4)
            if sw & c.rd: g = max(g, 2)
            if p.kind == 'trans' and c.kind != 'trans' and vw & c.rd: g = max(g, 1)
        if c.kind in ('vld', 'vst') and sw & c.rd: g = max(g, 5)
        if c.kind in ('salu', 'branch', 'smem') and sw & c.rd: g = max(g, 1)
        if ('exec', 0) in p.wr: g = max(g, 5)
    if p.kind == 'mfma':
        n8 = '32x32' in p.op
        far = 12 if n8 else 8
        if c.kind == 'mfma':
            if p.wr & c.srcab: g = max(g, far)
            if p.wr & c.srcc and p.wr != c.srcc: g = max(g, 10 if n8 else 6)
            if p.wr & c.wr and not (p.wr & c.srcc): g = max(g, far)
        elif is_valu(c):
            if p.wr & (c.rd | c.wr): g = max(g, far)
            if p.srcc & c.wr: g = max(g, 7 if n8 else 3)
        elif c.kind in ('vld', 'vst', 'dsr', 'dsw'):
            if p.wr & (c.rd | c.wr): g = max(g, far)
    if p.kind in ('vst', 'dsw') and p.wide:
        if p.srcc & c.wr: g = max(g, 2)
    if p.kind == 'salu' and ('m0', 0) in p.wr and ('m0', 0) in c.rd: g = max(g, 1)
    return g

class Prog:
    def __init__(self):
        self.ins = []
    def e(self, text, tag=None, meta=None):
        for line in text.strip().split('\n'):
            line = line.strip()
            if line and not line.startswith(';'):
                self.ins.append(I(line, tag, meta))
    def extend(self, other):
        self.ins.extend(other.ins if isinstance(other, Prog) else other)

def parse_wait(text):
    vm = re.search(r'vmcnt\((\d+)\)', text); lg = re.search(r'lgkmcnt\((\d+)\)', text)
    return (int(vm.group(1)) if vm else None, int(lg.group(1)) if lg else None)

def insert_waits(ins):
    out = []
    vm = []
    lg = []
    def need(lst, pred):
        idx = -1
        for k, o in enumerate(lst):
            if pred(o): idx = k
        return None if idx < 0 else len(lst) - 1 - idx
    sm = []
    for i in ins:
        nv = nl = None
        if i.kind == 'pseudo':
            a = i.op.split()
            if a[0] == '@wait_tag':
                nv = need(vm, lambda o: o.tag == a[1])
            elif a[0] == '@wait_lds':
                nl = 0 if lg else None
            elif a[0] == '@wait_ldstag':
                nl = need(lg, lambda o: o.tag in a[1:])

            elif a[0] == '@wait_vm':
                nv = 0 if vm else None
            else:
                out.append(i); continue
        elif i.kind == 'wait':
            v, l = parse_wait(i.text)
            if v is not None: vm = vm[len(vm) - v:] if v < len(vm) else vm
            if v == 0: vm = []
            if l is not None: lg = lg[len(lg) - l:] if l < len(lg) else lg
            if l == 0: lg = []; sm = []
            out.append(i); continue
        else:
            touched = i.rd | i.wr
            nv = need(vm, lambda o: o.wr & touched)
            nl = need(lg, lambda o: o.wr & touched)
            if any(o.wr & touched for o in sm): nl = 0
        if nv is not None or nl is not None:
            s = 's_waitcnt'
            if nv is not None:
                nv = min(nv, 63); s += f' vmcnt({nv})'; vm = vm[len(vm) - nv:] if nv else []
            if nl is not None:
                nl = min(nl, 15); s += f' lgkmcnt({nl})'; lg = lg[len(lg) - nl:] if nl else []
                if nl == 0: sm = []
            out.append(I(s))
        if i.kind == 'pseudo': continue
        out.append(i)
        if i.kind in ('vld', 'vst'): vm.append(i)
        if i.kind in ('dsr', 'dsw'): lg.append(i)
        if i.kind == 'smem': sm.append(i)
    return out

def insert_nops(ins):
    out = []
    for i in ins:
        if i.kind in ('label', 'pseudo'):
            out.append(i); continue
        dist = 0; need = 0
        for p in reversed(out):
            if dist >= 14: break
            g = required_gap(p, i)
            if g > dist: need = max(need, g - dist)
            dist += p.states()
        if need:
            out.append(I(f's_nop {need - 1}'))
        out.append(i)
    return out

def render(ins):
    L = []
    for i in ins:
        if i.kind == 'pseudo': continue
        L.append(i.text if i.kind == 'label' else '  ' + i.text)
    return '\n'.join(L)

def finalize(prog):
    return render(insert_nops(insert_waits(prog.ins)))

def magic(div, maxval):
    for sh in range(1, 25):
        mul = -(-(1 << sh) // div)
        if mul >= (1 << 24) or maxval * mul >= (1 << 32): continue
        if all((x * mul) >> sh == x // div for x in range(maxval + 1)): return mul, sh
    raise ValueError
```

```python
S, D, F, H, DH = 2048, 640, 1536, 32, 20
NFRAG = 270
FB_K, FB_V, FB_Q, FB_WO, FB_W1, FB_W2, FB_W3, FB_W4 = 0, 25, 50, 75, 100, 125, 150, 210
WS_W = 0x0000000
WS_CSUM = 0x08E0000
CS_K, CS_V, CS_Q, CS_W1, CS_W3 = 0, 80, 160, 240, 320
WS_WPHI = 0x0888000
WS_ID = 0x0890000
WS_KVF = 0x08A0000
KVF_LAYER = 32 * 4096
WS_KVP = 0x0900000
KVP_LAYER = 32 * 3840
KVP_HEAD = 2 * KVP_LAYER
WS_ARENA = 0x1100000
TILE = 20480
A_X, A_O, A_X2, A_X1, A_H = 0, 4 * TILE, 8 * TILE, 12 * TILE, 16 * TILE
A_H3 = 22 * TILE
A_ST = A_H3 + 4 * 49152
ARENA = 0xA8000
assert A_ST + 3 * 4096 <= ARENA
def act(name): return WS_ARENA + {'X': A_X, 'O': A_O, 'X2': A_X2, 'X1': A_X1, 'H': A_H, 'H3': A_H3}[name]
def stat(name): return WS_ARENA + A_ST + 4096 * {'X': 0, 'X2': 1, 'X1': 2}[name]
WS_SIZE = 0x10000000
WS_DUMP = 0x4000000
assert WS_KVP + 32 * KVP_HEAD <= WS_ARENA and WS_KVF + 2 * KVF_LAYER <= WS_KVP
assert 8 * 4 * NFRAG * 1024 <= WS_WPHI and WS_KVF + 2 * KVF_LAYER <= WS_CSUM and WS_CSUM + 8 * 16384 <= WS_KVP
KA_X, KA_WQKV, KA_WPHI, KA_WO, KA_BX, KA_W1, KA_W2, KA_W3, KA_W4, KA_OUT, KA_DBG, KA_WS = [8 * i for i in range(12)]
```

```python
import struct, os
from asmgen import *
from layout import *
from prep import stats_reduce, srd

def f32(x): return '0x%08x' % struct.unpack('<I', struct.pack('<f', x))[0]

L_RED, L_KT = 0, 61440
L_WPHI = L_KT + 36864
L_CSUM = L_WPHI + 3840
L_KVF = L_CSUM + 2048
KVS = 2048 + 32
L_ZERO = L_KVF + 8448
MAIN_LDS = L_ZERO + 2048
assert L_WPHI % 256 == 0 and L_KVF % 256 == 0 and L_ZERO % 256 == 0
vL16, vL8, vW = 1, 2, 3
vRW = [4, 5, 6]; vRR = 7
vBDW, vBDK, vKTW, vKTR, vCS80, vCS192, vSTW, vSTR = 8, 9, 10, 11, 12, 13, 14, 15
vH16 = [16, 17, 18, 19]
vPOI = 20
vHS, vSEC, vSTG = 24, 25, 26
vHST = 32 + 80 + 11
vT = 27
vMean, vR = 28, 30
vA = 32
vK = vA + 80
vS = [128, 148, 168, 188]
vR0, vR1 = 208, 228
vX = 248
vTL, vOUT = 254, 255
sWS, sOUT = 4, 8
sRB, sCS, sWV, sHD = 12, 13, 14, 15
sT = [16, 17, 18, 19]; sT3 = [20, 21, 22, 23]
sOWN, sOWN3, sSTL, sSTS = 24, 25, 26, 27
sHALO, sMODE, sXCC, sHW = 28, 29, 30, 31
sA = [32, 33, 34, 35]; sA2 = [36, 37, 38, 39]
sTO, sWO, sTMP, sTMP2, sFT, sST = 40, 41, 42, 43, 44, 45
sP = 46
sKVPS, sKVPL, sKVFS, sKVFL = 52, 53, 54, 55
sLOG2E, sC1, sC2 = 56, 58, 59
sOOB = 3
sLKV = 101
sCODE = 96
sCO = 100
sOB, sOBH = 50, 51
sOWNT = 62
sXP = 60
sSTB = 63
POOL = 63
aDUM = 252
PACE = int(os.environ.get('PACE', 68))
NEED = 25
LOOK = 12
CODEPF = float(os.environ.get('CODEPF', 0))
NBURST = int(os.environ.get('NBURST', 8))
FINE = ('WO', 'W2')
QUIET = 72
KV1_AT = int(os.environ.get('KV1_AT', 84))
KV2_EXP = 24
ID_AT = 55
EPS = 1e-5
LDSLAT = 9
NEXT = {'O': 'X2', 'X2': 'H', 'H': 'X1', 'X1': 'H3'}
WSR = f's[{sWS}:{sWS + 3}]'
GAPCOST = {'valu': 4, 'trans': 8, 'salu': 0, 'dsr': 4, 'dsw': 8, 'vld': 4, 'vst': 4, 'barrier': 0, 'branch': 0, 'wait': 0, 'label': 0, 'pseudo': 0, 'smem': 4, 'nop': 4, 'mfma': 16}

def cost_of(item):
    t = item[0] if isinstance(item, tuple) else item
    return sum(8 if 'permlane' in l else GAPCOST[I(l).kind] for l in t.split('\n') if l.strip())

class Gen:
    def __init__(self, stamps=False):
        self.p = Prog()
        self.ool = []
        self.nlab = 0
        self.stamps = stamps
        self.stamp_names = []
        self.pending = 0
        self.fillq = {}
    zi = 0
    def e(self, *a, **k):
        self.p.e(*a, **k)
        if self.zi and len(self.p.ins) >= self.zi and self.pending < 13:
            self.zi = 0
            self.tick(f'L1.zi{self.pending}:' + self.p.ins[-1].text[:28].replace(' ', '_'), True)
            self.zi = len(self.p.ins) + int(os.environ.get('ZSTEP', 20))
    def lab(self, s):
        self.nlab += 1
        return f'L_{s}_{self.nlab}'

    def tick(self, name, force=False):
        if not self.stamps: return
        if name == os.environ.get('ZI'):
            force = True; self.zi = len(self.p.ins) + int(os.environ.get('ZSTEP', 20))
        if os.environ.get('ZOOM') and not (force or name.startswith(('RT', 'entry', 'L1.end')) or name.endswith('_sent')): return
        r = 64 + 2 * self.pending
        assert r < 95
        self.pending += 1
        self.stamp_names.append(name)
        self.e(f's_mem{"real" if name.startswith("RT") else ""}time s[{r}:{r + 1}]')
        if os.environ.get('RETRIES') and name.endswith(('_sent', '_ready', '.p1', '.p2', '.p3')) and not name.startswith('RT'):
            self.e(f's_mov_b32 s{r + 2}, s{sTO}'); self.pending += 1; self.stamp_names.append('RTc.' + name)
            if self.pending > 14: self.flush_ok = True
    def flush(self):
        if not self.stamps or not self.pending: return
        self.zi = 0
        n0 = len(self.stamp_names) - self.pending
        self.e('s_waitcnt lgkmcnt(0)')
        for k in range(self.pending):
            self.e(f'v_writelane_b32 v{vT}, s{64 + 2 * k}, {k}')
        self.e(f'v_lshlrev_b32 v{vX + 5}, 2, v0')
        self.e(f'v_cmp_gt_u32 vcc, {self.pending}, v0')
        self.e(f'v_cndmask_b32 v{vX + 5}, -16, v{vX + 5}, vcc')
        self.e(f'v_and_b32 v{vX + 5}, 0x800000ff, v{vX + 5}')
        self.e(f'buffer_store_dword v{vT}, v{vX + 5}, {WSR}, s{sSTB} offen offset:{4 * n0}')
        self.pending = 0

    def dual_store(self, stores):
        if os.environ.get('ALLSC1'): return [x + ' sc1' for x in stores]
        Ls = self.lab('slow'); Lb = self.lab('back')
        out = [f's_cmp_eq_u32 s{sMODE}, 0', f's_cbranch_scc1 {Ls}'] + stores + [f'{Lb}:']
        self.ool.append(f'{Ls}:\n  s_nop 3\n' + '\n'.join('  ' + x + ' sc1' for x in stores) + f'\n  s_branch {Lb}')
        return out

    def check(self, regs, reload, after=None, zero=False):
        Lr = self.lab('retry'); Lk = self.lab('ok'); Lo = self.lab('rout')
        def mx(rr=None):
            out = []; rs = list(rr or regs); op = 'min' if zero else 'max'; bad = 0 if zero else -1
            if len(rs) == 1: return [f'v_cmp_eq_u32 vcc, {bad}, v{rs[0]}']
            if len(rs) == 2: out.append(f'v_{op}_u32 v{vT}, v{rs[0]}, v{rs[1]}'); rs = []
            else: out.append(f'v_{op}3_u32 v{vT}, v{rs[0]}, v{rs[1]}, v{rs[2]}'); rs = rs[3:]
            while len(rs) >= 2:
                out.append(f'v_{op}3_u32 v{vT}, v{vT}, v{rs[0]}, v{rs[1]}'); rs = rs[2:]
            if rs: out.append(f'v_{op}_u32 v{vT}, v{vT}, v{rs[0]}')
            out.append(f'v_cmp_eq_u32 vcc, {bad}, v{vT}')
            return out
        flat = lambda L: [y for x in L for y in x.split('\n')]
        aft = []
        if after:
            yr = [min(r for _, r in I(x).wr) for x in flat(after) if 'load' in x and I(x).wr]
            aft = ['  ' + x for x in mx(yr)] + ['  s_nop 1', f'  s_cbranch_vccz {Lk}'] + ['  ' + x for x in flat(after)]
        blk = [f'{Lr}:', f'  s_sub_u32 s{sTO}, s{sTO}, 1', f'  s_cbranch_scc1 {Lo}_to'] + ['  ' + x for x in flat(reload)] + ['  s_waitcnt vmcnt(0)'] + \
              ['  ' + x for x in mx()] + ['  s_nop 1', f'  s_cbranch_vccnz {Lr}', f'{Lo}:'] + aft + [f'  s_branch {Lk}',
               f'{Lo}_to:', f'  s_mov_b32 s{sTO}, 0', '  s_waitcnt vmcnt(0)', f'  s_branch {Lk}']
        self.ool.append('\n'.join(blk))
        return mx() + [f's_cbranch_vccnz {Lr}\n{Lk}:']

    def a_setup(self, name, halo=False, stats=False):
        base = act(name); L = []
        for ps in range(4):
            L.append(f's_add_u32 s{sA[ps]}, s{sHW if halo else sT[ps]}, {base}')
            L.append(f's_add_u32 s{sA2[ps]}, s{sHW if halo else sT[ps]}, {base + 4096}')
        if stats: L.append(f's_add_u32 s{sST}, s{sSTL}, {stat(name)}')
        return L
    def a_loads(self, ps, halo=False):
        A = vA + 20 * ps
        v = vH16[ps] if halo else vL16
        return [f'buffer_load_dwordx4 v[{A + 4 * k}:{A + 4 * k + 3}], v{v}, {WSR}, s{sA[ps] if k < 4 else sA2[ps]} offen offset:{1024 * (k & 3)} sc1' for k in range(5)]
    def a_chk(self, ps): return [vA + 20 * ps + 4 * k for k in range(5)]
    def a3_setup(self, grp, base):
        half, ps = grp >> 2, grp & 3
        return f's_add_u32 s{sA[ps]}, s{sT3[ps]}, {base + half * 6144}\ns_add_u32 s{sA2[ps]}, s{sT3[ps]}, {base + half * 6144 + 4096}'
    def a3_loads(self, grp):
        ps = grp & 3
        A = vA + 24 * ps
        return [f'buffer_load_dwordx4 v[{A + 4 * k}:{A + 4 * k + 3}], v{vL16}, {WSR}, s{sA[ps] if k < 4 else sA2[ps]} offen offset:{1024 * (k & 3)} sc1' for k in range(6)]
    def a3_chk(self, grp): return [vA + 24 * (grp & 3) + 4 * k for k in range(6)]

    def stat_loads(self):
        return [f'buffer_load_dwordx2 v[{vK}:{vK + 1}], v{vSTR}, {WSR}, s{sST} offen sc1',
                f'buffer_load_dwordx2 v[{vK + 2}:{vK + 3}], v{vSTR}, {WSR}, s{sST} offen offset:512 sc1']
    def stat_finish(self):
        k = vK; L = [f'v_add_f32 v{k}, v{k}, v{k + 2}', f'v_add_f32 v{k + 1}, v{k + 1}, v{k + 3}']
        for sw in (16, 32):
            L += [f'v_mov_b32 v{k + 2}, v{k}', f'v_mov_b32 v{k + 3}, v{k + 1}', f'v_permlane{sw}_swap_b32 v{k}, v{k + 2}', f'v_permlane{sw}_swap_b32 v{k + 1}, v{k + 3}',
                  f'v_add_f32 v{k}, v{k}, v{k + 2}', f'v_add_f32 v{k + 1}, v{k + 1}, v{k + 3}']
        return L + [f'v_mul_f32 v{vMean}, {f32(-1 / 640)}, v{k}', f'v_mul_f32 v{k + 1}, {f32(1 / 640)}, v{k + 1}',
                f'v_fma_f32 v{vMean + 1}, -v{vMean}, v{vMean}, v{k + 1}', f'v_max_f32 v{vMean + 1}, 0, v{vMean + 1}',
                f'v_add_f32 v{vR + 1}, {f32(EPS)}, v{vMean + 1}', f'v_rsq_f32 v{vR}, v{vR + 1}']

    def x_stores(self, pk, base, fill=False, soff=sOWN, v16=vL16, vt=vTL, st=sTMP):
        W = f'{WSR}, s{st} offen'
        r = (lambda o: f'v[{vPOI}:{vPOI + 3}]') if fill else (lambda o: f'v[{pk + o}:{pk + o + 3}]')
        return f's_add_u32 s{st}, s{soff}, {base - 1024}', [f'buffer_store_dwordx4 {r(0)}, v{v16}, {W} offset:1024',
                f'buffer_store_dwordx4 {r(4)}, v{v16}, {W} offset:2048', f'buffer_store_dwordx4 {r(8)}, v{vt}, {W}']
    def h3_stores(self, pk, c, fill=False, st=sTMP):
        r = (lambda o: f'v[{vPOI}:{vPOI + 3}]') if fill else (lambda o: f'v[{pk + o}:{pk + o + 3}]')
        return f's_add_u32 s{st}, s{sOWN3}, {act("H3") + 2048 * c}', [f'buffer_store_dwordx4 {r(0)}, v{vL16}, {WSR}, s{st} offen',
                f'buffer_store_dwordx4 {r(4)}, v{vL16}, {WSR}, s{st} offen offset:1024']
    def st_stores(self, reg, base, st=sTMP):
        return f's_add_u32 s{st}, s{sSTS}, {base}', [f'buffer_store_dword v{reg}, v{vSTG}, {WSR}, s{st} offen']
    def put(self, pre_st, tag=None, sc1=False):
        pre, st = pre_st
        body = [x + ' sc1' for x in st] if sc1 else self.dual_store(st)
        return ('\n'.join(['@hold_on', pre] + body + ['@hold_off']), tag)
    def hst(self): return f'v_and_or_b32 v{vHST}, v{vHS}, s{sOOB}, v{vTL}'
    def fills(self, names, ly=0, sc1=False):
        out = []
        def one(pre, st, sc1, n):
            for x in st: out.append(self.put((pre, [x]), 'fill' + n, sc1) + (n,))
        for n in names:
            if n in ('X', 'O', 'X2', 'X1', 'H'):
                one(*self.x_stores(0, act(n), fill=True, st=sFT), sc1, n)
                if n in ('X', 'X2', 'X1'): one(*self.st_stores(vPOI, stat(n), st=sFT), sc1, n)
            elif n == 'H3':
                for c in range(3): one(*self.h3_stores(0, c, fill=True, st=sFT), sc1, n)
            elif n == 'HALO':
                pre, st = self.x_stores(0, act('H') + ly * TILE, fill=True, soff=sHALO, v16=vHS, vt=vHST, st=sFT)
                one(self.hst() + '\n' + pre, st, True, n)
            elif n == 'KVP':
                pre = f's_add_u32 s{sFT}, s{sKVPS}, {WS_KVP + ly * KVP_LAYER}'
                one(pre, [f'buffer_store_dwordx4 v[{vPOI}:{vPOI + 3}], v{vL16}, {WSR}, s{sFT} offen offset:{o}' for o in (0, 1024, 2048, 2816)], True, n)
            elif n == 'KVF':
                pre = f's_add_u32 s{sFT}, s{sKVFS}, {WS_KVF + ly * KVF_LAYER}'
                one(pre, [f'buffer_store_dword v{vPOI}, v{vSTG}, {WSR}, s{sFT} offen'], True, n)
        return out
    def touch(self, name):
        return []
        if name == 'H3':
            L = [f's_add_u32 s{sFT}, s{sOWN3}, {act(name)}\nbuffer_load_dword a{aDUM}, v{vSEC}, {WSR}, s{sFT} offen offset:{o} sc1' for o in (0, 2560, 3584)]
        else:
            L = [f's_add_u32 s{sFT}, s{sOWNT}, {act(name)}\nbuffer_load_dword a{aDUM}, v{vSEC}, {WSR}, s{sFT} offen sc1']
            if name in ('X', 'X2', 'X1'):
                L.append(f's_add_u32 s{sFT}, s{sSTS}, {stat(name)}\nbuffer_load_dword a{aDUM + 1}, v{vSTG}, {WSR}, s{sFT} offen sc1')
        return ['@hold_on\n' + x + '\n@hold_off' for x in L]
    def add_touch(self, side, at, name):
        for k, x in enumerate(self.touch(name)): side.setdefault(at + 4 * k, []).append(x)
    def open_fills(self, items):
        k = len(self.fillq); self.fillq[k] = items
        return f'@fills {k}'
    def emit_items(self, items):
        for x in items:
            if isinstance(x, tuple): self.e(x[0], tag=x[1])
            else: self.e(x)
    def sanitize(self, regs):
        for r in regs: self.e(f'v_min_u32 v{r}, -2, v{r}')

    def chunk(self, frag0, nt, ks, areg, cinit=None, side=None, pre=None, first=True, last=True, endbar=False, late=None, early=None,
              bg=None, bg_from=0, bg_by=None, order0=None, hooks=None, cs=None, name=None):
        side = {k: list(v) for k, v in (side or {}).items()}
        pre = {k: list(v) for k, v in (pre or {}).items()}
        hooks = hooks or {}
        per = ks * nt
        seq = []
        for ps in range(4):
            if ps == 0 and order0: seq += [(ps, j, s) for s in order0 for j in range(nt)]
            else: seq += [(ps, j, s) for j in range(nt) for s in range(ks)]
        done = {}; started = {}
        for n, (ps, j, s) in enumerate(seq):
            done[(ps, j)] = n; started.setdefault((ps, j), n)
        def add(pos, ins): side.setdefault(pos, []).append(ins)
        tasks = []
        class T:
            def __init__(t, item, prio, ready=0, deps=(), dl=None, pk=None):
                t.item = item; t.prio = prio; t.ready = ready; t.deps = list(deps); t.dl = dl; t.at = None; t.pk = pk
                tasks.append(t)
        def stream(items, prio, ready, deps=(), dl=None):
            prev = None; out = []
            for x in items:
                lat = LDSLAT if (prev is not None and isinstance(prev.item, str) and prev.item.startswith('ds_read') and not (isinstance(x, str) and x.startswith('ds_read'))) else 0
                prev = T(x, prio, ready, list(deps) + ([(prev, lat)] if prev else []), dl); out.append(prev)
            return out
        use_c = last and first
        self.bars = []
        if last:
            pos = -99; wpos = {}
            for (ps, j) in sorted([k for k in done if k[0] < 3], key=lambda k: done[k]):
                pos = max(done[(ps, j)] + (6 if (ps == 2 and j == nt - 1) else 8), pos + 3)
                add(pos, (f'ds_write_b128 v{vRW[ps]}, v[{vS[ps] + 4 * j}:{vS[ps] + 4 * j + 3}] offset:{1024 * j}', f'w{ps}{j}'))
                wpos[(ps, j)] = pos
            groups = [[(ps, j) for j in list(range(1, nt)) + [0] for ps in range(2)], [(2, j) for j in range(nt)]]
            rd = {}
            for gi, G in enumerate(groups):
                b = min(max(wpos[k] for k in G) + LDSLAT, 4 * per - 1 - LDSLAT + 1)
                add(b, '@wait_ldstag st ' + ' '.join(f'w{ps}{j}' for ps, j in G)); add(b, 's_barrier'); self.bars.append(b)
                for (ps, j) in G:
                    rd[(ps, j)] = T(f'ds_read_b128 v[{vS[ps] + 4 * j}:{vS[ps] + 4 * j + 3}], v{vRR} offset:{5120 * ps + 1024 * j}', 0, b)
            def adds(j, d, src, prio, ready, deps, dl=None):
                out = []
                for k in range(4):
                    out.append(T(f'v_add_f32 v{d + 4 * j + k}, v{d + 4 * j + k}, v{src + 4 * j + k}', prio, ready, deps, dl, pk=(d + 4 * j + k, src + 4 * j + k)))
                return out
            se = stream(early or [], 0.5, 2 * per)
            mean_ready = [x for x in se if isinstance(x.item, str) and x.item.startswith(f'v_mul_f32 v{vMean},')]
            s1 = []
            prevfin = []
            for j in range(nt):
                uc = use_c and j > 0
                dl = 3 * per + j * ks - 2 if uc else None
                a0 = adds(j, vS[0], cinit, 1, 0, [(rd[(0, j)], LDSLAT)], dl) if (uc and cinit is not None) else []
                a1 = adds(j, vS[0], vS[1], 1 if (j or not use_c) else 1.5, 0, [(rd[(0, j)], LDSLAT), (rd[(1, j)], LDSLAT)], dl)
                if cs is not None:
                    cr = T(f'ds_read_b128 v[{vS[2] + 4 * j}:{vS[2] + 4 * j + 3}], v{cs[0]} offset:{cs[1] + 16 * j}', -1, wpos[(2, j)] + 1)
                    cf = [T(f'v_fmac_f32 v{vS[0] + 4 * j + k}, v{vMean}, v{vS[2] + 4 * j + k}', 0.8, 0,
                            [(cr, LDSLAT), (rd[(0, j)], LDSLAT)] + [(x, 0) for x in mean_ready], dl if uc else self.bars[1] - 1) for k in range(4)]
                    rd[(2, j)].deps += [(x, 0) for x in cf]
                    a1 = a1 + cf
                s1 += a1
                if uc: f = adds(j, vS[3], vS[2], 2, done[(3, j)] + 8, [(rd[(2, j)], LDSLAT)])
                elif use_c:
                    f = adds(j, vS[3], vS[0], 1.6, done[(3, j)] + 8, [(x, 0) for x in a1])
                    f += adds(j, vS[3], vS[2], 2, done[(3, j)] + 8, [(rd[(2, j)], LDSLAT)])
                else:
                    a2 = adds(j, vS[0], vS[2], 1, 0, [(rd[(0, j)], LDSLAT), (rd[(2, j)], LDSLAT)])
                    f = adds(j, vS[3], vS[0], 2, done[(3, j)] + 8, [(x, 0) for x in a1 + a2])
                prevfin += f
                if j in hooks: prevfin += stream(hooks[j], 2, 0, [(x, 0) for x in prevfin])
            stream(late or [], 4, 3 * per, [(x, 0) for x in s1])
        stream(bg or [], 5, bg_from, dl=(bg_by - 1 if bg_by is not None else None))
        def ok(t, n): return t.ready <= n and all(d.at is not None and d.at + lat <= n for d, lat in t.deps)
        def emit(t, n):
            for d, _ in t.deps:
                if d.at is None: emit(d, n)
            t.at = n
            if isinstance(t.item, tuple) and t.item[0] == 'blk':
                self.emit_items(t.item[1]); return 99
            self.emit_items([t.item]); return cost_of(t.item)
        def is_rd(t): return isinstance(t.item, str) and t.item.startswith('ds_read_b128')
        def is_salu(t): return isinstance(t.item, str) and t.item.startswith('s_')
        for n, (ps, j, s) in enumerate(seq):
            if name == os.environ.get('ZOOM'):
                if n % int(os.environ.get('ZSTEP', 6)) == 0 and n >= int(os.environ.get('ZFROM', 0)) and self.pending < 14: self.tick(f'{name}.z{n}', True)
            if name and n % per == 0: self.tick(f'{name}.p{ps}')
            d = vS[ps] + 4 * j
            if started[(ps, j)] == n and first:
                if ps == 3 and use_c and j > 0: c = f'v[{vS[0] + 4 * j}:{vS[0] + 4 * j + 3}]'
                elif ps == 3 and cinit is not None: c = f'v[{cinit + 4 * j}:{cinit + 4 * j + 3}]'
                else: c = '0'
            else:
                c = f'v[{d}:{d + 3}]'
            g = frag0 + j * ks + s
            sl = 4 * (g % POOL)
            a = areg(ps, s)
            self.emit_items(pre.pop(n, []))
            self.e(f'v_mfma_f32_16x16x32_bf16 v[{d}:{d + 3}], a[{sl}:{sl + 3}], v[{a}:{a + 3}], {c}', meta=('W', g))
            fixed = side.pop(n, [])
            self.emit_items(fixed)
            budget = 8 - sum(cost_of(x) for x in fixed) - (4 if n % 4 == 2 else 0)
            for t in tasks:
                if t.at is None and t.dl is not None and t.dl <= n:
                    assert t.ready <= n and all(dd.at is not None or dd.ready <= n for dd, _ in t.deps), (name, n, t.item)
                    budget -= emit(t, n)
            nrd = 0; nsa = 0
            while True:
                cand = [t for t in tasks if t.at is None and ok(t, n) and not (is_rd(t) and nrd) and not (is_salu(t) and nsa)
                        and budget >= (4 if isinstance(t.item, tuple) and t.item[0] == 'blk' else min(cost_of(t.item), 8))]
                if not cand: break
                t = min(cand, key=lambda t: t.prio)
                nrd += is_rd(t); nsa += is_salu(t)
                budget -= emit(t, n)
        assert not pre
        for k in sorted(side): self.emit_items(side[k])
        if name: self.tick(f'{name}.mfma_end')
        n = len(seq)
        rest = sorted([t for t in tasks if t.at is None], key=lambda t: (not is_rd(t), {3: 1.5, 4: 1.6}.get(t.prio, t.prio)))
        for k, t in enumerate(rest):
            if t.at is not None: continue
            nx = rest[k + 1] if k + 1 < len(rest) else None
            if t.pk and t.pk[0] % 2 == 0 and nx is not None and nx.at is None and nx.pk == (t.pk[0] + 1, t.pk[1] + 1):
                for dd, _ in t.deps + nx.deps:
                    if dd.at is None: emit(dd, n)
                a, b = t.pk
                self.e(f'v_pk_add_f32 v[{a}:{a + 1}], v[{a}:{a + 1}], v[{b}:{b + 1}]'); t.at = nx.at = n
            else: emit(t, n)
        if endbar: self.e('s_barrier')

    ORDER0 = [0, 3, 1, 4, 2]
    def start_phase(self, name, halo=False, stats=False, nt=5, checked=True, entry=None, fill=None, post=None, nburst=None):
        per = 5 * nt
        NB = NBURST if nburst is None else nburst
        l0 = [self.a_loads(0, halo)[s] for s in self.ORDER0]
        rest = self.a_loads(1, halo) + self.a_loads(2, halo) + (self.stat_loads() if stats else []) + self.a_loads(3, halo)
        if entry is not None:
            self.e('@pf_burst 3')
            for x in l0: self.e(x)
            self.e('@nopf_off')
            for x in entry: self.e(x)
        self.e('@pf_need')
        self.e('@nopf_on')
        if checked: self.e('@hold_on')
        burst = (l0 if entry is None else []) + rest[:NB]
        fill = list(fill or [])
        share = (len(fill) + len(burst) - 2) // max(1, len(burst) - 1)
        for k, x in enumerate(burst):
            self.e(x)
            if k == 1: self.e('s_barrier')
            if k >= 1:
                for y in fill[:share]: self.e(y)
                fill = fill[share:]
        for y in fill: self.e(y)
        dummy = []
        for x in (post or []):
            self.e(x[0].replace('@hold_on', '').replace('@hold_off', ''))
            dummy.append(f'buffer_load_dword a{aDUM + 1}, v{vSTG}, {WSR}, s{sST} offen')
        self.e('@time 150')
        side = {}; pre = {}
        step = 4 if nt == 5 else 3
        pos = {}
        for k, x in enumerate(rest[NB:]):
            side.setdefault(k * step + 1, []).append(x); pos[x] = k * step + 1
        side.setdefault(len(rest[NB:]) * step - 2, []).append('@nopf_off')
        if checked:
            A = vA
            for gi, (k0, k1) in enumerate(((0, 2), (2, 4), (4, 5))):
                at = k0 * nt
                younger = l0[k1:] + rest[:NB] + dummy + [x for x in rest[NB:] if pos[x] < at]
                c = self.check([A + 4 * s for s in self.ORDER0[k0:k1]], l0[k0:k1], younger)
                if gi == 0: pre[0] = c
                else:
                    for x in c[:-1]: side.setdefault(at - 2, []).append(x)
                    pre[at] = [c[-1]]
            pre[4 * nt].append('@hold_off')
            for ps in (1, 2, 3):
                st = ps == 2 and stats
                c = self.check(self.a_chk(ps) + ([vK, vK + 2] if st else []), self.a_loads(ps, halo) + (self.stat_loads() if st else []))
                for k, x in enumerate(c[:-1]): side.setdefault(ps * per - 2 - (len(c) - 2 - k) // 2, []).append(x)
                pre[ps * per] = [c[-1]]
        return side, pre

    def cs_reads(self, dst, vaddr, off, n4):
        return [f'ds_read_b128 v[{dst + 4 * k}:{dst + 4 * k + 3}], v{vaddr} offset:{off + 16 * k}' for k in range(n4)]
    def center(self, acc, cs, n):
        return [f'v_pk_fma_f32 v[{acc + k}:{acc + k + 1}], v[{cs + k}:{cs + k + 1}], v[{vMean}:{vMean + 1}], v[{acc + k}:{acc + k + 1}] op_sel_hi:[1,0,1] neg_lo:[0,1,0] neg_hi:[0,1,0]' for k in range(0, n, 2)]
    def scale(self, dst, src, sc, n):
        return [f'v_pk_mul_f32 v[{dst + k}:{dst + k + 1}], v[{src + k}:{src + k + 1}], v[{sc}:{sc + 1}] op_sel_hi:[1,0]' for k in range(0, n, 2)]
    def pack(self, dst, src, n):
        return [f'v_cvt_pk_bf16_f32 v{dst + k // 2}, v{src + k}, v{src + k + 1}' for k in range(0, n, 2)]
    def gelu_a(self, t, tmp, n):
        c1, c2 = vX, vX + 2; L = []
        for k in range(0, n, 2):
            T = f'v[{t + k}:{t + k + 1}]'; U = f'v[{tmp + k}:{tmp + k + 1}]'
            L += [f'v_pk_mul_f32 {U}, {T}, {T}', f'v_pk_fma_f32 {U}, {U}, v[{c2}:{c2 + 1}], v[{c1}:{c1 + 1}] op_sel_hi:[1,0,0]', f'v_pk_mul_f32 {U}, {U}, {T}']
        return L
    def gelu_b(self, t, tmp, n, packed=True):
        ir = vX + 4
        L = [f'v_exp_f32 v{tmp + k}, v{tmp + k}' for k in range(n)]
        if packed: L += [f'v_pk_fma_f32 v[{tmp + k}:{tmp + k + 1}], v[{tmp + k}:{tmp + k + 1}], v[{ir}:{ir + 1}], v[{ir}:{ir + 1}] op_sel_hi:[1,0,0]' for k in range(0, n, 2)]
        else: L += [f'v_fma_f32 v{tmp + k}, v{tmp + k}, v{ir}, v{ir}' for k in range(n)]
        L += [f'v_rcp_f32 v{tmp + k}, v{tmp + k}' for k in range(n)]
        if packed: L += [f'v_pk_mul_f32 v[{t + k}:{t + k + 1}], v[{t + k}:{t + k + 1}], v[{tmp + k}:{tmp + k + 1}]' for k in range(0, n, 2)]
        else: L += [f'v_mul_f32 v{t + k}, v{t + k}, v{tmp + k}' for k in range(n)]
        return L
    def gelu_consts(self, r):
        return [f'v_mul_f32 v{vX}, s{sC1}, v{r}', f'v_mul_f32 v{vX + 2}, v{r}, v{r}', f'v_mul_f32 v{vX + 2}, v{vX + 2}, v{r}',
                f'v_mul_f32 v{vX + 2}, s{sC2}, v{vX + 2}', f'v_rcp_f32 v{vX + 4}, v{r}']

    def piece(self, pi, src, name, halo_ly=None):
        pk = vS[0]
        if pi < 2: L = self.pack(pk + 4 * pi, src + 8 * pi, 8)
        else: L = self.pack(pk + 8, src + 16, 4) + [f'v_permlane32_swap_b32 v{pk + 8}, v{pk + 10}', f'v_permlane32_swap_b32 v{pk + 9}, v{pk + 11}']
        L.append(f'v_min_u32 v{pk + 4 * pi}, -2, v{pk + 4 * pi}')
        if pi == 0 and name in NEXT: L.append('@wait_tag fill' + NEXT[name])
        pre, st = self.x_stores(pk, act(name), st=sOB)
        L.append(self.put(('', [st[pi]])))
        if halo_ly is not None:
            pre, st = self.x_stores(pk, act('H') + halo_ly * TILE, soff=sHALO, v16=vHS, vt=vHST, st=sOBH)
            L.append(self.put(('', [st[pi]]), sc1=True))
        return L
    def out_setup(self, name, halo_ly=None):
        L = [self.x_stores(0, act(name), st=sOB)[0]]
        if halo_ly is not None: L += [self.x_stores(0, act('H') + halo_ly * TILE, soff=sHALO, st=sOBH)[0], self.hst()]
        return L
    def piece_hooks(self, name):
        return {1: self.piece(0, vS[3], name), 3: self.piece(1, vS[3], name), 4: self.piece(2, vS[3], name)}
    def stats_calc(self, x):
        a, b = vX, vX + 2
        L = [f'v_pk_add_f32 v[{a}:{a + 1}], v[{x}:{x + 1}], v[{x + 2}:{x + 3}]', f'v_pk_mul_f32 v[{b}:{b + 1}], v[{x}:{x + 1}], v[{x}:{x + 1}]',
             f'v_pk_fma_f32 v[{b}:{b + 1}], v[{x + 2}:{x + 3}], v[{x + 2}:{x + 3}], v[{b}:{b + 1}]']
        for k in range(4, 20, 2):
            L.append(f'v_pk_add_f32 v[{a}:{a + 1}], v[{a}:{a + 1}], v[{x + k}:{x + k + 1}]')
            L.append(f'v_pk_fma_f32 v[{b}:{b + 1}], v[{x + k}:{x + k + 1}], v[{x + k}:{x + k + 1}], v[{b}:{b + 1}]')
        L += [f'v_add_f32 v{a}, v{a}, v{a + 1}', f'v_add_f32 v{b}, v{b}, v{b + 1}',
              f'v_permlane16_swap_b32 v{a}, v{b}', f'v_add_f32 v{a}, v{a}, v{b}', f'v_mov_b32 v{a + 1}, v{a}',
              f'v_permlane32_swap_b32 v{a}, v{a + 1}', f'v_add_f32 v{a}, v{a}, v{a + 1}', f'v_min_u32 v{vX + 4}, -2, v{a}']
        return L
    def stats_put(self, name): return [self.put(self.st_stores(vX + 4, stat(name)))]

    def phi_mm(self, P):
        kb = vS[0]; fr = vS[0] + 12
        nb = 7
        order = [(jf, sd) for sd in range(3) for jf in range(5)]
        def rd(i):
            jf, sd = order[i]; b = fr + 4 * (i % nb)
            self.e(f'ds_read_b128 v[{b}:{b + 3}], v{vBDW} offset:{192 * jf + 16 * sd}')
        for i in range(nb): rd(i)
        self.emit_items(self.pack(kb, vS[3], 20))
        self.e(f'v_mov_b32 v{kb + 10}, 0'); self.e(f'v_mov_b32 v{kb + 11}, 0')
        for i, (jf, sd) in enumerate(order):
            b = fr + 4 * (i % nb); d = P + 4 * jf
            c = '0' if sd == 0 else f'v[{d}:{d + 3}]'
            self.e(f'v_mfma_f32_16x16x32_bf16 v[{d}:{d + 3}], v[{b}:{b + 3}], v[{kb + 4 * sd}:{kb + 4 * sd + 3}], {c}')
            if i + nb < 15: rd(i + nb)
    def phi_sm(self, P, E, out):
        mx, mn, lr = vX, vX + 2, vX + 4
        A = [f'v_max3_f32 v{mx}, v{P}, v{P + 1}, v{P + 2}', f'v_min3_f32 v{mn}, v{P}, v{P + 1}, v{P + 2}']
        for k in range(3, 19, 2):
            A += [f'v_max3_f32 v{mx}, v{mx}, v{P + k}, v{P + k + 1}', f'v_min3_f32 v{mn}, v{mn}, v{P + k}, v{P + k + 1}']
        A += [f'v_max_f32 v{mx}, v{mx}, v{P + 19}', f'v_min_f32 v{mn}, v{mn}, v{P + 19}', f'v_mul_f32 v{mx}, v{lr}, v{mx}', f'v_mul_f32 v{mn}, v{lr}, v{mn}']
        blk = []
        for k in range(0, 20, 2):
            blk.append(f'v_pk_fma_f32 v[{E + k}:{E + k + 1}], v[{P + k}:{P + k + 1}], v[{lr}:{lr + 1}], v[{mx}:{mx + 1}] op_sel_hi:[1,0,0] neg_lo:[0,0,1] neg_hi:[0,0,1]')
            blk.append(f'v_pk_fma_f32 v[{P + k}:{P + k + 1}], v[{P + k}:{P + k + 1}], v[{lr}:{lr + 1}], v[{mn}:{mn + 1}] op_sel_hi:[1,0,0] neg_lo:[1,0,0] neg_hi:[1,0,0]')
        A.append(('blk', blk))
        X = [f'v_exp_f32 v{E + k}, v{E + k}' for k in range(20)] + [f'v_exp_f32 v{P + k}, v{P + k}' for k in range(20)]
        blk = []
        for (B, s_) in ((E, mx), (P, mn)):
            blk.append(f'v_pk_add_f32 v[{s_}:{s_ + 1}], v[{B}:{B + 1}], v[{B + 2}:{B + 3}]')
            for k in range(4, 20, 2): blk.append(f'v_pk_add_f32 v[{s_}:{s_ + 1}], v[{s_}:{s_ + 1}], v[{B + k}:{B + k + 1}]')
            blk += [f'v_add_f32 v{s_}, v{s_}, v{s_ + 1}', f'v_rcp_f32 v{s_}, v{s_}']
        blk += self.scale(E, E, mx, 20) + self.scale(P, P, mn, 20)
        T = [('blk', blk)] + self.pack(out, E, 20) + self.pack(out + 10, P, 20)
        return A, X, T
    def run(self, items):
        for x in items:
            if isinstance(x, tuple) and x[0] == 'blk': self.emit_items(x[1])
            else: self.emit_items([x])

    def prologue(self):
        e = self.e
        e(f's_getpc_b64 s[{sCODE}:{sCODE + 1}]')
        e('s_cmp_ge_u32 s2, 256')
        e('s_cbranch_scc1 L_main_exit')
        e(f's_load_dwordx2 s[{sWS}:{sWS + 1}], s[0:1], {KA_WS}')
        e(f's_load_dwordx2 s[{sOUT}:{sOUT + 1}], s[0:1], {KA_OUT}')
        e(f's_load_dwordx2 s[{sXP}:{sXP + 1}], s[0:1], {KA_X}')
        e('v_lshrrev_b32 v32, 6, v0')
        e(f'v_readfirstlane_b32 s{sWV}, v32')
        e('v_and_b32 v0, 63, v0')
        e(f's_lshr_b32 s{sTMP}, s2, 3')
        e(f's_and_b32 s{sCS}, s{sTMP}, 7')
        e(f's_lshr_b32 s{sTMP}, s{sTMP}, 3')
        e(f's_and_b32 s{sRB}, s2, 7')
        e(f's_lshl_b32 s{sRB}, s{sRB}, 2')
        e(f's_add_u32 s{sRB}, s{sRB}, s{sTMP}')
        e(f'v_lshlrev_b32 v{vL16}, 4, v0')
        e(f'v_lshlrev_b32 v{vL8}, 3, v0')
        e(f'v_lshlrev_b32 v{vSEC}, 7, v0')
        e(f's_and_b32 s{sCODE + 1}, s{sCODE + 1}, 0xffff')
        e(f's_mov_b32 s{sCODE + 2}, L_main_end-L_main_begin-256')
        e(f's_mov_b32 s{sCODE + 3}, 0x00020000')
        e('@code 2')
        e(f's_lshl_b32 s{sHD}, s{sCS}, 2')
        e(f's_add_u32 s{sHD}, s{sHD}, s{sWV}')
        e(f's_mul_i32 s{sTMP}, s{sHD}, {NFRAG * 1024}')
        e(f'v_add_u32 v{vW}, s{sTMP}, v{vL16}')
        e(f's_mul_i32 s{sFT}, s{sRB}, {ARENA}')
        e(f's_mul_i32 s{sHW}, s{sWV}, 5120')
        for ps in range(4):
            e(f's_add_u32 s{sP + ps}, s{sWV}, {ps + 1}')
            e(f's_and_b32 s{sP + ps}, s{sP + ps}, 3')
            e(f's_mul_i32 s{sT[ps]}, s{sP + ps}, {TILE}')
            e(f's_add_u32 s{sT[ps]}, s{sT[ps]}, s{sHW}')
            e(f's_add_u32 s{sT[ps]}, s{sT[ps]}, s{sFT}')
        e(f's_lshl_b32 s{sTMP2}, s{sWV}, 7')
        e(f's_add_u32 s{sSTL}, s{sFT}, s{sTMP2}')
        e('s_waitcnt lgkmcnt(0)')
        e(f's_and_b32 s{sWS + 1}, s{sWS + 1}, 0xffff')
        e(f's_mov_b32 s{sWS + 2}, {WS_SIZE}')
        e(f's_mov_b32 s{sWS + 3}, 0x00020000')
        self.tick('entry')
        self.tick('RT0')

    def prologue2(self):
        L = []
        e = L.append
        e(f's_and_b32 s{sOUT + 1}, s{sOUT + 1}, 0xffff')
        e(f's_mov_b32 s{sOUT + 2}, {S * D * 2}')
        e(f's_mov_b32 s{sOUT + 3}, 0x00020000')
        for ps in range(4):
            if ps < 3:
                e(f's_mul_i32 s{sTMP2}, s{sP + ps}, 15360')
                e(f's_add_u32 s{sTMP2}, s{sTMP2}, {L_RED + 5120 * ps}')
                e(f'v_add_u32 v{vRW[ps]}, s{sTMP2}, v{vL16}')
            e(f's_mul_i32 s{sT3[ps]}, s{sP + ps}, 49152')
            e(f's_mul_i32 s{sTMP2}, s{sWV}, 12288')
            e(f's_add_u32 s{sT3[ps]}, s{sT3[ps]}, s{sTMP2}')
            e(f's_add_u32 s{sT3[ps]}, s{sT3[ps]}, s{sFT}')
        e(f's_lshr_b32 s{sTMP}, s{sCS}, 1')
        e(f's_mul_i32 s{sTMP}, s{sTMP}, 5120')
        e(f's_and_b32 s{sTMP2}, s{sCS}, 1')
        e(f's_mul_i32 s{sTMP2}, s{sTMP2}, 3072')
        e(f's_add_u32 s{sTMP}, s{sTMP}, s{sTMP2}')
        e(f's_add_u32 s{sTMP}, s{sTMP}, s{sFT}')
        e(f's_add_u32 s{sHALO}, s{sTMP}, {4 * TILE}')
        e(f's_mul_i32 s{sOWN}, s{sWV}, {TILE}')
        e(f's_add_u32 s{sOWN}, s{sOWN}, s{sTMP}')
        e(f's_and_b32 s{sTMP2}, s{sCS}, 1')
        e(f's_lshl_b32 s{sTMP2}, s{sTMP2}, 9')
        e(f's_sub_u32 s{sOWNT}, s{sOWN}, s{sTMP2}')
        e(f's_lshl_b32 s{sTMP}, s{sWV}, 3')
        e(f's_add_u32 s{sTMP}, s{sTMP}, s{sCS}')
        e(f's_mul_i32 s{sOWN3}, s{sTMP}, 6144')
        e(f's_add_u32 s{sOWN3}, s{sOWN3}, s{sFT}')
        e(f's_lshl_b32 s{sTMP2}, s{sCS}, 9')
        e(f's_add_u32 s{sSTS}, s{sFT}, s{sTMP2}')
        e(f's_lshl_b32 s{sTMP2}, s{sWV}, 7')
        e(f's_add_u32 s{sSTS}, s{sSTS}, s{sTMP2}')
        e(f's_mov_b32 s{sTO}, 20000')
        e(f's_mov_b32 s{sMODE}, 0')
        e(f's_getreg_b32 s{sXCC}, hwreg(HW_REG_XCC_ID)')
        e(f's_and_b32 s{sXCC}, s{sXCC}, 15')
        e(f's_add_u32 s{sXCC}, s{sXCC}, 1')
        t = vK
        r16, g, oob = t, t + 1, t + 2
        a, b, c = t + 3, t + 4, t + 5
        e(f'v_and_b32 v{r16}, 15, v0')
        e(f'v_lshrrev_b32 v{g}, 4, v0')
        e(f'v_mov_b32 v{oob}, 0x80000000')
        for k in range(4): e(f'v_mov_b32 v{vPOI + k}, -1')
        e(f's_lshl_b32 s{sTMP}, s{sRB}, 2')
        e(f's_add_u32 s{sTMP}, s{sTMP}, s{sWV}')
        e(f's_mul_i32 s{sTMP}, s{sTMP}, {16 * 1280}')
        e(f's_mul_i32 s{sTMP2}, s{sCS}, 160')
        e(f's_add_u32 s{sTMP}, s{sTMP}, s{sTMP2}')
        e(f'v_mul_u32_u24 v{a}, 1280, v{r16}')
        e(f'v_mad_u32_u24 v{a}, v{g}, 40, v{a}')
        e(f'v_add_u32 v{vOUT}, s{sTMP}, v{a}')
        e(f's_bitcmp1_b32 s{sCS}, 0')
        e(f's_movk_i32 s{sTMP}, 3072')
        e(f's_cselect_b32 s{sTMP}, 512, s{sTMP}')
        e(f'v_add_u32 v{a}, s{sTMP}, v{vL16}')
        e(f'v_cmp_gt_u32 vcc, 32, v0')
        e(f'v_cndmask_b32 v{vTL}, v{oob}, v{a}, vcc')
        e(f's_bitcmp1_b32 s{sWV}, 0')
        e(f's_cselect_b32 s50, 1, -1')
        e(f's_lshr_b32 s{sTMP}, s{sWV}, 1')
        e(f's_lshl_b32 s50, s50, s{sTMP}')
        e(f's_lshl_b32 s{sTMP2}, s{sRB}, 6')
        e(f's_add_u32 s50, s50, s{sTMP2}')
        e(f's_mov_b32 s51, {ARENA}')
        for ps in range(4):
            e(f's_lshl_b32 s{sTMP}, s{sP + ps}, 4')
            e(f's_add_u32 s{sTMP}, s{sTMP}, s50')
            e(f'v_add_u32 v{a}, s{sTMP}, v{r16}')
            e(f'v_bfe_u32 v{b}, v{a}, 4, 2')
            e(f'v_lshrrev_b32 v{c}, 6, v{a}')
            e(f'v_cmp_eq_u32 vcc, s{sRB}, v{c}')
            e(f'v_cndmask_b32 v{b}, 4, v{b}, vcc')
            e(f'v_cmp_gt_u32 vcc, 2048, v{a}')
            e(f'v_mul_lo_u32 v{c}, v{c}, s51')
            e(f'v_mul_u32_u24 v{b}, {TILE}, v{b}')
            e(f'v_and_b32 v{a}, 15, v{a}')
            e(f'v_lshl_add_u32 v{a}, v{g}, 4, v{a}')
            e(f'v_lshl_add_u32 v{a}, v{a}, 4, v{b}')
            e(f'v_add_u32 v{a}, v{a}, v{c}')
            e(f'v_cndmask_b32 v{vH16[ps]}, v{oob}, v{a}, vcc')
        e(f's_bitcmp1_b32 s{sCS}, 1')
        e(f's_cselect_b32 s{sTMP}, 0, 62')
        e(f's_lshl_b32 s{sTMP2}, s{sWV}, 4')
        e(f's_sub_u32 s{sTMP}, s{sTMP2}, s{sTMP}')
        e(f'v_add_u32 v{a}, s{sTMP}, v{r16}')
        e(f'v_cmp_gt_u32 vcc, 2, v{a}')
        e(f'v_cndmask_b32 v{vHS}, v{oob}, v{vL16}, vcc')
        e(f's_mov_b32 s{sOOB}, 0x80000000')
        e(f's_mov_b32 s{sLKV}, {L_KVF}')
        e(f's_mul_i32 s{sTMP}, s{sWV}, 15360')
        e(f'v_add_u32 v{vRR}, s{sTMP}, v{vL16}')
        e(f'v_lshrrev_b32 v{a}, 2, v{r16}')
        e(f'v_cmp_eq_u32 vcc, v{a}, v{g}')
        e(f'v_and_b32 v{a}, 3, v0')
        e(f'v_mul_u32_u24 v{b}, 960, v{g}')
        e(f'v_mad_u32_u24 v{b}, v{a}, 48, v{b}')
        e(f'v_add_u32 v{b}, {L_WPHI}, v{b}')
        e(f'v_lshrrev_b32 v{c}, 5, v0')
        e(f'v_lshlrev_b32 v{t + 6}, 4, v{c}')
        e(f'v_add_u32 v{t + 6}, {L_ZERO + 16}, v{t + 6}')
        e(f'v_cndmask_b32 v{vBDW}, v{t + 6}, v{b}, vcc')
        e(f'v_mul_u32_u24 v{b}, 80, v{a}')
        e(f'v_mul_u32_u24 v{t + 6}, {KVS}, v{g}')
        e(f'v_add3_u32 v{b}, v{b}, v{t + 6}, s{sLKV}')
        e(f'v_lshlrev_b32 v{t + 6}, 6, v{c}')
        e(f'v_add_u32 v{t + 6}, {L_ZERO + 48}, v{t + 6}')
        e(f'v_cndmask_b32 v{vBDK}, v{t + 6}, v{b}, vcc')
        e(f's_lshl_b32 s{sTMP}, s{sWV}, 4')
        e(f'v_lshl_add_u32 v{b}, v{g}, 6, v{r16}')
        e(f'v_add_u32 v{b}, s{sTMP}, v{b}')
        e(f'v_mul_u32_u24 v{b}, 144, v{b}')
        e(f'v_add_u32 v{vKTW}, {L_KT}, v{b}')
        e(f's_lshl_b32 s{sTMP}, s{sWV}, 6')
        e(f'v_lshrrev_b32 v{b}, 2, v{r16}')
        e(f'v_lshl_add_u32 v{b}, v{g}, 3, v{b}')
        e(f'v_add_u32 v{b}, s{sTMP}, v{b}')
        e(f'v_mul_u32_u24 v{b}, 144, v{b}')
        e(f'v_lshl_add_u32 v{b}, v{a}, 3, v{b}')
        e(f'v_add_u32 v{vKTR}, {L_KT}, v{b}')
        e(f'v_mul_u32_u24 v{b}, 80, v{g}')
        e(f'v_add_u32 v{vCS80}, {L_CSUM}, v{b}')
        e(f'v_mul_u32_u24 v{b}, 192, v{g}')
        e(f'v_add_u32 v{vCS192}, {L_CSUM + 4 * CS_W3}, v{b}')
        e(f'v_lshlrev_b32 v{b}, 3, v{r16}')
        e(f'v_lshl_add_u32 v{vSTR}, v{g}, 10, v{b}')
        e(f'v_lshl_add_u32 v{b}, v{g}, 2, v{b}')
        e(f'v_cmp_gt_u32 vcc, 2, v{g}')
        e(f'v_cndmask_b32 v{vSTG}, v{oob}, v{b}, vcc')
        e(f's_mul_i32 s{sKVPL}, s{sHD}, {KVP_HEAD}')
        e(f's_mul_i32 s{sTMP2}, s{sRB}, 3840')
        e(f's_add_u32 s{sKVPS}, s{sKVPL}, s{sTMP2}')
        e(f's_lshl_b32 s{sTMP2}, s{sRB}, 7')
        e(f's_add_u32 s{sKVPL}, s{sKVPL}, s{sTMP2}')
        e(f's_lshl_b32 s{sKVFL}, s{sHD}, 12')
        e(f's_add_u32 s{sKVFS}, s{sKVFL}, s{sTMP2}')
        e(f's_mov_b32 s{sLOG2E}, {f32(1.4426950408889634)}')
        e(f's_mov_b32 s{sLOG2E + 1}, {f32(1.4426950408889634)}')
        c1 = -2.0 * 0.7978845608028654 * 1.4426950408889634
        e(f's_mov_b32 s{sC1}, {f32(c1)}')
        e(f's_mov_b32 s{sC2}, {f32(c1 * 0.044715)}')
        if self.stamps:
            e(f's_lshl_b32 s{sTMP}, s2, 2')
            e(f's_add_u32 s{sTMP}, s{sTMP}, s{sWV}')
            e(f's_lshl_b32 s{sTMP}, s{sTMP}, 10')
            e(f's_add_u32 s{sSTB}, s{sTMP}, {0x8000000}')
        e(f's_mul_i32 s{sTMP}, s{sWV}, 960')
        e(f's_add_u32 s{sTMP}, s{sTMP}, {L_WPHI}')
        e(f'v_add_u32 v{b}, s{sTMP}, v{vL16}')
        e(f'v_mov_b32 v{c}, {L_KVF}')
        e(f'v_cmp_gt_u32 vcc, 60, v0')
        e(f'v_cndmask_b32 v{t + 8}, v{c}, v{b}, vcc')
        e(f's_lshl_b32 s{sTMP}, s{sWV}, 9')
        e(f's_add_u32 s{sTMP2}, s{sTMP}, {L_CSUM}')
        e(f'v_and_b32 v{t + 9}, 0x1f0, v{vL16}')
        e(f'v_add_u32 v{t + 9}, s{sTMP2}, v{t + 9}')
        e(f's_add_u32 s{sTMP2}, s{sTMP}, {L_ZERO}')
        e(f'v_add_u32 v{b}, s{sTMP2}, v{vL8}')
        e(f'v_mov_b32 v{t + 6}, 0'); e(f'v_mov_b32 v{t + 7}, 0')
        e(f'ds_write_b64 v{b}, v[{t + 6}:{t + 7}]')
        return L

    def table_items(self):
        t = vR1; c = vR0
        loads = [f's_mul_i32 s{sTMP}, s{sHD}, 960\ns_add_u32 s{sTMP}, s{sTMP}, {WS_WPHI}\nbuffer_load_dwordx4 v[{t + 12}:{t + 15}], v{vL16}, {WSR}, s{sTMP} offen']
        loads += [f's_lshl_b32 s{sTMP}, s{sHD}, 12\ns_add_u32 s{sTMP}, s{sTMP}, {WS_CSUM}\nbuffer_load_dwordx4 v[{c + 4 * k}:{c + 4 * k + 3}], v{vL16}, {WSR}, s{sTMP} offen offset:{1024 * k}' for k in range(4)]
        loads += [f'global_load_dwordx4 v[{t}:{t + 3}], v{vOUT}, s[{sXP}:{sXP + 1}]',
                  f'global_load_dwordx4 v[{t + 4}:{t + 7}], v{vOUT}, s[{sXP}:{sXP + 1}] offset:16',
                  f'global_load_dwordx2 v[{t + 8}:{t + 9}], v{vOUT}, s[{sXP}:{sXP + 1}] offset:32']
        use = [(f'ds_write_b128 v{vK + 8}, v[{t + 12}:{t + 15}]', 'st')]
        for q in (1, 2, 3): use += [f'v_add_f32 v{c + k}, v{c + k}, v{c + 4 * q + k}' for k in range(4)]
        use += [f'v_mov_b32 v{c + 4 + k}, v{c + k}' for k in range(4)] + [f'v_permlane32_swap_b32 v{c + k}, v{c + 4 + k}' for k in range(4)]
        use += [f'v_add_f32 v{c + k}, v{c + k}, v{c + 4 + k}' for k in range(4)] + [(f'ds_write_b128 v{vK + 9}, v[{c}:{c + 3}]', 'st')]
        unpack = []
        for k in range(10):
            unpack.append(f'v_lshlrev_b32 v{vR0 + 2 * k}, 16, v{t + k}')
            unpack.append(f'v_and_b32 v{vR0 + 2 * k + 1}, 0xffff0000, v{t + k}')
        return loads, use, unpack

    def layer(self, ly):
        e = self.e; run = self.run
        fb = ly * NFRAG
        A5 = lambda ps, s: vA + 20 * ps + 4 * s
        S3 = vS[3]
        N = f'L{ly}'
        O0 = self.ORDER0
        lnearly = self.stat_finish()
        keep = [f'v_mov_b64 v[{vR0 + k}:{vR0 + k + 1}], v[{S3 + k}:{S3 + k + 1}]' for k in range(0, 20, 2)]
        self.tick(f'{N}.start')
        if ly == 0:
            run(self.a_setup('X', stats=True))
            side, pre = self.start_phase('X', stats=True, checked=False, entry=self.prologue2())
            tl, tu, unpack = self.table_items()
            for k, x in enumerate(tl): side.setdefault(3 + 4 * k if k < 5 else 40 + 4 * k, []).append(x)
            for k, x in enumerate(tu): side.setdefault(36 + k // 2, []).append(x)
            side.setdefault(58, []).extend(['@wait_ldstag st', 's_barrier'])
            side.setdefault(80, []).append(self.open_fills(self.fills(['KVP', 'KVF', 'O', 'HALO'], ly=0, sc1=True)))
        else:
            side, pre = self.start_phase('X', stats=True, fill=self.stats_calc(S3) + keep, post=self.stats_put('X'))
        self.chunk(fb + FB_K, 5, 5, A5, side=side, pre=pre, early=lnearly + [f'v_mul_f32 v{vX + 4}, s{sLOG2E}, v{vR}'], cs=(vCS80, 4 * CS_K), endbar=True, order0=O0, name=f'{N}.K')
        if ly == 0: run(unpack)
        self.phi_mm(vR1)
        self.tick(f'{N}.K.mm')
        self.flush()
        hd, ex, tl_ = self.phi_sm(vR1, S3, S3)
        bg = hd + ex + tl_ + [f'ds_write_b128 v{vKTW}, v[{S3 + 4 * k}:{S3 + 4 * k + 3}] offset:{16 * k}' for k in range(5)]
        side = {}
        if ly == 0:
            side = {36: ['@fills_flush'], 64: ['@wait_tag fillHALO'], 70: [self.open_fills(self.fills(['KVP', 'KVF', 'HALO'], ly=1, sc1=True))],
                    68: [f'v_mov_b32 v{vK}, s{sXCC}', f's_lshl_b32 s{sFT}, s{sRB}, 3', f's_add_u32 s{sFT}, s{sFT}, s{sCS}', f's_lshl_b32 s{sFT}, s{sFT}, 6',
                         f's_add_u32 s{sFT}, s{sFT}, {WS_ID}', f'v_mov_b32 v{vK + 1}, 0',
                         f'buffer_store_dword v{vK}, v{vK + 1}, {WSR}, s{sFT} offen sc1']}
        o = vK + 4
        offs = [f'v_and_b32 v{o + 4}, 7, v0', f'v_lshrrev_b32 v{o + 5}, 4, v0', f'v_lshlrev_b32 v{o + 4}, 4, v{o + 4}',
                f'v_lshl_add_u32 v{o + 1}, v{o + 5}, 7, v{o + 4}', f'v_mov_b32 v{o + 6}, 0x80000000', f'v_and_b32 v{o + 4}, 8, v0',
                f'v_cmp_ne_u32 vcc, 0, v{o + 4}', f'v_cndmask_b32 v{o + 1}, v{o + 6}, v{o + 1}, vcc', f'v_cmp_gt_u32 vcc, 32, v0',
                f'v_cndmask_b32 v{o + 2}, v{o + 6}, v{vL16}, vcc', f'v_cndmask_b32 v{o + 3}, v{o + 6}, v{o + 1}, vcc']
        self.chunk(fb + FB_V, 5, 5, A5, side=side, cs=(vCS80, 4 * CS_V), late=offs, bg=bg, bg_from=2, bg_by=75, name=f'{N}.V')
        assert any(64 < b < 68 for b in self.bars), self.bars
        run(self.scale(S3, S3, vR, 20) + self.pack(vS[0], S3, 20))
        e(f'v_mov_b32 v{vS[0] + 10}, 0x3f80'); e(f'v_mov_b32 v{vS[0] + 11}, 0')
        for k in range(3): e(f'ds_write_b128 v{vKTW}, v[{vS[0] + 4 * k}:{vS[0] + 4 * k + 3}] offset:{80 + 16 * k}')
        e('@wait_lds'); e('s_barrier')
        self.tick(f'{N}.V.done')
        Dv = vS[2]
        for st in range(2):
            for k, c0 in enumerate((0, 16, 32, 40, 48)):
                b = vS[st] + 4 * k
                for hf in range(2):
                    e(f'ds_read_b64_tr_b16 v[{b + 2 * hf}:{b + 2 * hf + 1}], v{vKTR} offset:{(st * 32 + hf * 4) * 144 + 2 * c0}')
        for st in range(2):
            for a in range(3):
                for b in range(2):
                    d = Dv + 4 * (2 * a + b)
                    c = '0' if st == 0 else f'v[{d}:{d + 3}]'
                    fa = vS[st] + 4 * a; fbb = vS[st] + 12 + 4 * b
                    e(f'v_mfma_f32_16x16x32_bf16 v[{d}:{d + 3}], v[{fa}:{fa + 3}], v[{fbb}:{fbb + 3}], {c}')
        side = {2: [f's_add_u32 s{sTMP}, s{sKVPS}, {WS_KVP + ly * KVP_LAYER}']}; pre = {}
        for a in range(3):
            for b in range(2):
                d = Dv + 4 * (2 * a + b)
                va = [[vL16, o + 1], [vL16, o + 1], [o + 2, o + 3]][a][b]
                side.setdefault(3 + 2 * (2 * a + b), []).extend([f'v_min_u32 v{d}, -2, v{d}',
                    f'buffer_store_dwordx4 v[{d}:{d + 3}], v{va}, {WSR}, s{sTMP} offen offset:{1024 * a if b == 0 else 2560 + 512 * a} sc1'])
        s2 = [f'v_lshrrev_b32 v{vK + 12}, 3, v0', f'v_mul_u32_u24 v{vK + 12}, {4 * 3840}, v{vK + 12}', f'v_and_b32 v{vK + 13}, 7, v0',
              f'v_lshl_add_u32 v{vK + 12}, v{vK + 13}, 4, v{vK + 12}', f'@hold_on\ns_cmp_lt_u32 s{sRB}, 30\ns_cselect_b32 s{sTMP2}, 0, 0x80000000\n@hold_off',
              f'v_or_b32 v{vK + 12}, s{sTMP2}, v{vK + 12}', f'v_mov_b32 v{vK + 13}, 0x80000000', f'v_cmp_gt_u32 vcc, 8, v0', f'v_cndmask_b32 v{vK + 13}, v{vK + 13}, v{vL8}, vcc']
        for k, x in enumerate(s2): side.setdefault(30 + k, []).append(x)
        if ly == 0:
            side.setdefault(60, []).append('@fills_flush HALO')
            idr = [vR1 + 16, vR1 + 17, vR1 + 18, vR1 + 19, vK]
            side.setdefault(0, []).extend([f'v_lshlrev_b32 v{vK + 1}, 6, v0', f'v_and_b32 v{vK + 2}, 7, v0'])
            side.setdefault(1, []).extend([f'v_lshlrev_b32 v{vK + 2}, 6, v{vK + 2}'])
            idl = [f's_mov_b32 s{sTMP2}, {WS_ID + 4096 * t}\nbuffer_load_dword v{idr[t]}, v{vK + 1}, {WSR}, s{sTMP2} offen sc1' for t in range(4)]
            idl.append(f's_lshl_b32 s{sTMP2}, s{sRB}, 9\ns_add_u32 s{sTMP2}, s{sTMP2}, {WS_ID}\nbuffer_load_dword v{vK}, v{vK + 2}, {WSR}, s{sTMP2} offen sc1')
            for k, x in enumerate(idl): side.setdefault(15 + 2 * k, []).append(x)
            c = self.check(idr, idl, zero=True)
            for x in c[:-1]: side.setdefault(ID_AT - 3, []).append(x)
            pre[ID_AT - 1] = [c[-1], f'v_cmp_ne_u32 vcc, s{sXCC}, v{vK}', f'@hold_on\ns_cmp_eq_u64 vcc, 0\ns_cselect_b32 s{sMODE}, 1, 0\n@hold_off']
        R = vR1
        kl = [f's_add_u32 s{sTMP2}, s{sKVPL}, {WS_KVP + ly * KVP_LAYER + 3840 * t}\n'
              f'buffer_load_dwordx4 v[{R + 4 * t}:{R + 4 * t + 3}], v{vK + 12}, {WSR}, s{sTMP2} offen sc1' for t in range(4)]
        for k, x in enumerate(kl): side.setdefault(KV1_AT + 3 * k, []).append(x)
        self.add_touch(side, 70, 'O')
        self.chunk(fb + FB_Q, 5, 5, A5, side=side, pre=pre, early=self.out_setup('O') + self.a_setup('O'), cs=(vCS80, 4 * CS_Q), name=f'{N}.Q')
        self.phi_mm(vS[2])
        run(self.check([R + 4 * t for t in range(4)], kl))
        self.tick(f'{N}.kv1_ready')
        for k in (0, 2):
            e(f'v_pk_add_f32 v[{R + k}:{R + k + 1}], v[{R + k}:{R + k + 1}], v[{R + 4 + k}:{R + 5 + k}]')
            e(f'v_pk_add_f32 v[{R + 8 + k}:{R + 9 + k}], v[{R + 8 + k}:{R + 9 + k}], v[{R + 12 + k}:{R + 13 + k}]')
        for k in (0, 2):
            e(f'v_pk_add_f32 v[{R + k}:{R + k + 1}], v[{R + k}:{R + k + 1}], v[{R + 8 + k}:{R + 9 + k}]')
        for k in range(4):
            e(f'v_add_f32_dpp v{R + 4 + k}, v{R + k}, v{R + k} row_ror:8 row_mask:0xf bank_mask:0xf')
        for swap in (16, 32):
            for k in range(4): e(f'v_mov_b32 v{R + k}, v{R + 4 + k}')
            for k in range(4): e(f'v_permlane{swap}_swap_b32 v{R + k}, v{R + 4 + k}')
            for k in range(4): e(f'v_add_f32 v{R + 4 + k}, v{R + k}, v{R + 4 + k}')
        run(self.pack(vK + 14, R + 4, 4))
        self.sanitize([vK + 14])
        e(f's_add_u32 s{sTMP}, s{sKVFS}, {WS_KVF + ly * KVF_LAYER}')
        e(f'buffer_store_dwordx2 v[{vK + 14}:{vK + 15}], v{vK + 13}, {WSR}, s{sTMP} offen sc1')
        self.tick(f'{N}.kvf_sent')
        hd, ex, tl_ = self.phi_sm(vS[2], S3, vR1)
        ga, l0, l2, l3 = vA + 8, vA + 9, vA + 10, vA + 11
        q, ee, t1 = vA + 13, vA + 14, vA + 15
        e(f'v_lshrrev_b32 v{q}, 3, v0')
        e(f'v_and_b32 v{ee}, 7, v0')
        e(f'v_lshlrev_b32 v{ga}, 3, v{ee}')
        e(f'v_lshl_add_u32 v{ga}, v{q}, 7, v{ga}')
        e(f's_add_u32 s{sST}, s{sKVFL}, {WS_KVF + ly * KVF_LAYER}')
        e(f's_mul_i32 s{sTMP}, s{sWV}, {KVS}')
        e(f's_add_u32 s{sTMP}, s{sTMP}, {L_KVF}')
        e(f'v_and_b32 v{l0}, 15, v0')
        e(f'v_mul_u32_u24 v{l0}, 80, v{l0}')
        e(f'v_lshrrev_b32 v{t1}, 4, v0')
        e(f'v_lshl_add_u32 v{l0}, v{t1}, 3, v{l0}')
        e(f'v_add_u32 v{l0}, s{sTMP}, v{l0}')
        e(f'v_mul_u32_u24 v{l3}, 80, v{ee}')
        e(f'v_lshl_add_u32 v{l3}, v{q}, 3, v{l3}')
        e(f'v_add_u32 v{l3}, s{sTMP}, v{l3}')
        e(f'v_add_u32 v{l2}, {1280 - 32}, v{l3}')
        e(f'v_add_u32 v{l3}, {1280 + 32}, v{l3}')
        e(f'v_mov_b32 v{t1}, s{sTMP}')
        e(f'v_add_u32 v{t1}, 1984, v{t1}')
        e(f'v_cmp_gt_u32 vcc, 48, v0')
        e(f'v_cndmask_b32 v{l3}, v{t1}, v{l3}, vcc')
        e(f'v_add_u32 v{t1}, 64, v{l0}')
        e(f'v_cmp_gt_u32 vcc, 32, v0')
        e(f'v_cndmask_b32 v{l2}, v{l2}, v{t1}, vcc')
        run(hd)
        fl_ = [f'buffer_load_dwordx2 v[{vA + 2 * t}:{vA + 2 * t + 1}], v{ga}, {WSR}, s{sST} offen offset:{1024 * t} sc1' for t in range(4)]
        run(ex[:KV2_EXP])
        for k, x in enumerate(fl_):
            e(x); run(ex[KV2_EXP + 4 * k:KV2_EXP + 4 * k + 4])
        run(self.touch('X2'))
        run(ex[KV2_EXP + 16:])
        run(tl_)
        e(self.open_fills(self.fills(['X2', 'H', 'X1', 'H3'], sc1=(ly < int(os.environ.get('FILLSC1', 1))))))
        e('@fills_flush ' + os.environ.get('FILLTO', 'H3'))
        self.tick(f'{N}.Q.done')
        run(self.check([vA + 2 * t for t in range(4)], fl_))
        self.tick(f'{N}.kv2_ready')
        e(f'ds_write_b64 v{l0}, v[{vA}:{vA + 1}]')
        e(f'ds_write_b64 v{l0}, v[{vA + 2}:{vA + 3}] offset:32')
        e(f'ds_write_b64 v{l2}, v[{vA + 4}:{vA + 5}]')
        e(f'ds_write_b64 v{l3}, v[{vA + 6}:{vA + 7}]')
        e('@wait_lds'); e('s_barrier')
        e('@nopf_on')
        order = [(j, i) for j in (5, 0, 1, 2, 3, 4) for i in range(5)]
        nb = 15; fr = vA + 16
        def rd(n):
            j, i = order[n]; b = fr + 4 * (n % nb)
            e(f'ds_read_b128 v[{b}:{b + 3}], v{vBDK} offset:{320 * j + 16 * i}')
        for n in range(nb): rd(n)
        O = vS[2]
        sc = lambda k0, n: [f'v_mul_f32 v{O + k}, v{O + k}, v{vX}' for k in range(k0, k0 + n)]
        extra = {12: [f'v_add_f32 v{vX}, {f32(1e-6)}, v{O + 20}'], 13: [f'v_rcp_f32 v{vX}, v{vX}']}
        for k, x in enumerate(sc(0, 8) + self.piece(0, O, 'O')): extra.setdefault(21 + k // 2, []).append(x)
        for n, (j, i) in enumerate(order):
            b = fr + 4 * (n % nb); d = O + 4 * j
            c = '0' if i == 0 else f'v[{d}:{d + 3}]'
            e(f'v_mfma_f32_16x16x32_bf16 v[{d}:{d + 3}], v[{b}:{b + 3}], v[{vR1 + 4 * i}:{vR1 + 4 * i + 3}], {c}')
            if n + nb < 30: rd(n + nb)
            run(extra.pop(n, []))
        assert not extra
        run(sc(8, 8) + self.piece(1, O, 'O') + sc(16, 4) + self.piece(2, O, 'O'))
        self.tick(f'{N}.o_sent')
        self.flush()
        side, pre = self.start_phase('O', nburst=2)
        side.setdefault(60, []).append('@fills_flush H')
        self.add_touch(side, 54, 'H')
        side.setdefault(70, []).append('@fills_flush X1')
        self.chunk(fb + FB_WO, 5, 5, A5, cinit=vR0, side=side, pre=pre, early=self.out_setup('X2'), late=self.a_setup('X2', stats=True), order0=O0, hooks=self.piece_hooks('X2'), name=f'{N}.WO')
        self.tick(f'{N}.x2_sent')
        side, pre = self.start_phase('X2', stats=True, fill=self.stats_calc(S3) + keep, post=self.stats_put('X2'))
        self.add_touch(side, 44, 'X1')
        side.setdefault(75, []).append('@fills_flush H3')
        r12 = vK + 8
        early = lnearly + self.out_setup('H', ly) + [f'v_mul_f32 v{r12}, v{vR}, v{vR}', f'v_mov_b32 v{r12 + 1}, {f32(EPS)}', f'v_fma_f32 v{r12}, v{r12}, v{vMean + 1}, v{r12 + 1}',
                                f'v_rsq_f32 v{r12}, v{r12}', f'v_mul_f32 v{r12}, v{r12}, v{vR}'] + self.gelu_consts(r12)
        self.chunk(fb + FB_W1, 5, 5, A5, side=side, pre=pre, early=early, cs=(vCS80, 4 * CS_W1), late=self.a_setup('H', halo=True), order0=O0, name=f'{N}.W1')
        for pi, (k0, n) in enumerate(((0, 8), (8, 8), (16, 4))):
            run(self.gelu_a(S3 + k0, vS[1] + k0, n) + self.gelu_b(S3 + k0, vS[1] + k0, n))
            run(self.piece(pi, S3, 'H', halo_ly=ly))
        self.tick(f'{N}.h_sent')
        self.flush()
        xn = [f'v_pk_add_f32 v[{vR1 + k}:{vR1 + k + 1}], v[{vR0 + k}:{vR0 + k + 1}], v[{vMean}:{vMean + 1}] op_sel_hi:[1,0]' for k in range(0, 20, 2)]
        side, pre = self.start_phase('H', halo=True, fill=xn + self.scale(vR1, vR1, vR, 20))
        self.add_touch(side, 44, 'H3')
        self.chunk(fb + FB_W2, 5, 5, A5, cinit=vR1, side=side, pre=pre, early=self.out_setup('X1'), late=self.a_setup('X1', stats=True), order0=O0, hooks=self.piece_hooks('X1'), name=f'{N}.W2')
        self.tick(f'{N}.x1_sent')
        acc = [f'v_pk_add_f32 v[{vR0 + k}:{vR0 + k + 1}], v[{vR0 + k}:{vR0 + k + 1}], v[{S3 + k}:{S3 + k + 1}]' for k in range(0, 20, 2)]
        bg = []
        for c in range(3):
            csr = (vCS192, 64 * c)
            if c == 0:
                side, pre = self.start_phase('X1', stats=True, nt=4, fill=self.stats_calc(S3) + acc, post=self.stats_put('X1'))
                self.chunk(fb + FB_W3, 4, 5, A5, side=side, pre=pre, early=lnearly + self.gelu_consts(vR), cs=csr, endbar=True, order0=O0, name=f'{N}.W3a')
            else:
                late = []
                if c == 1 and ly == 0:
                    late.append(f's_mul_i32 s{sTMP2}, s{sRB}, {ARENA}')
                    for ps in range(4):
                        late += [f'v_subrev_u32 v{vT}, s{sTMP2}, v{vH16[ps]}', f'v_cmp_le_u32 vcc, {4 * TILE}, v{vT}', f'v_add_u32 v{vT}, {TILE}, v{vH16[ps]}',
                                 f'v_cndmask_b32 v{vH16[ps]}, v{vH16[ps]}, v{vT}, vcc']
                if c == 2: late += [y for gq in range(4) for y in self.a3_setup(gq, act('H3')).split('\n')]
                side = {}
                if ly == 0: side = {1: [self.open_fills(self.fills(['X', 'O']))]} if c == 1 else {30: ['@fills_flush']}
                self.chunk(fb + FB_W3 + 20 * c, 4, 5, A5, side=side, late=late, cs=csr, endbar=(c < 2), bg=bg, bg_from=1, bg_by=60, name=f'{N}.W3{"abc"[c]}')
            if c < 2:
                run(self.gelu_a(S3, vR1, 16))
                pre_, st = self.h3_stores(vK, c)
                bg = self.gelu_b(S3, vR1, 16, packed=False) + self.pack(vK, S3, 16) + [f'v_min_u32 v{vK}, -2, v{vK}', f'v_min_u32 v{vK + 4}, -2, v{vK + 4}', self.put((pre_, st))]
            else:
                pre_, st = self.h3_stores(vS[0], c)
                for hf in range(2):
                    k0 = 8 * hf
                    run(self.gelu_a(S3 + k0, vS[1] + k0, 8) + self.gelu_b(S3 + k0, vS[1] + k0, 8) + self.pack(vS[0] + 4 * hf, S3 + k0, 8))
                    e(f'v_min_u32 v{vS[0] + 4 * hf}, -2, v{vS[0] + 4 * hf}')
                    e('@wait_tag fillX'); e('@wait_tag fillO')
                    run([self.put((pre_, [st[hf]]))])
            if c != 1: self.flush()
        self.tick(f'{N}.h3_sent')
        b3 = act('H3')
        A6 = lambda ps, s: vA + 24 * ps + 4 * s
        e('@pf_need')
        e('@nopf_on')
        e('@hold_on')
        allld = [x for gq in range(8) for x in self.a3_loads(gq)]
        nb0 = 6 + NBURST
        for k, x in enumerate(allld[:nb0]):
            e(x)
            if k == 1: e('s_barrier')
        e('@time 150')
        pos = 1; sched = {}; where = {}
        for k in range(nb0, 48):
            gq = k // 6
            if gq >= 4: pos = max(pos, (gq - 3) * 30)
            item = allld[k]
            if gq >= 4 and k % 6 == 0: item = self.a3_setup(gq, b3) + '\n' + item
            sched.setdefault(pos, []).append(item); where[k] = pos; pos += 4
        for half in range(2):
            side = {k - 120 * half: v for k, v in sched.items() if 0 <= k - 120 * half < 120}; pre = {}
            for ps in range(4):
                g0 = half * 4 + ps
                if g0 == 0:
                    for gi in range(3):
                        at = 10 * gi
                        younger = [allld[k] for k in range(2 * gi + 2, 48) if k < nb0 or where[k] < at]
                        c = self.check(self.a3_chk(0)[2 * gi:2 * gi + 2], allld[2 * gi:2 * gi + 2], younger)
                        if gi == 0: pre[0] = c
                        else:
                            for x in c[:-1]: side.setdefault(at - 2, []).append(x)
                            pre[at] = [c[-1]]
                    pre[20] += ['@hold_off', '@nopf_off']
                    continue
                c = self.check(self.a3_chk(g0), self.a3_loads(g0))
                if ps == 0: pre[0] = c
                else:
                    for k, x in enumerate(c[:-1]): side.setdefault(ps * 30 - 2 - (len(c) - 2 - k) // 2, []).append(x)
                    pre[ps * 30] = [c[-1]]
            if half == 0 and ly == 0: self.add_touch(side, 100, 'X')
            fin = half == 1 and ly == 0
            self.chunk(fb + FB_W4 + 30 * half, 5, 6, A6, cinit=vR0, side=side, pre=pre, first=(half == 0), last=(half == 1),
                       order0=list(range(6)) if half == 0 else None, early=self.out_setup('X') if fin else None, late=self.a_setup('X', stats=True) if fin else None,
                       hooks=self.piece_hooks('X') if fin else None, name=f'{N}.W4{half}')
        if ly == 0:
            self.tick(f'{N}.x_sent')
            self.flush()
        else:
            run(self.pack(vS[0], S3, 20))
            O_ = f's[{sOUT}:{sOUT + 3}], 0 offen'
            e(f'buffer_store_dwordx4 v[{vS[0]}:{vS[0] + 3}], v{vOUT}, {O_}')
            e(f'buffer_store_dwordx4 v[{vS[0] + 4}:{vS[0] + 7}], v{vOUT}, {O_} offset:16')
            e(f'buffer_store_dwordx2 v[{vS[0] + 8}:{vS[0] + 9}], v{vOUT}, {O_} offset:32')
            self.tick(f'{N}.end')
            self.tick('RT1')
            if self.stamps:
                e('s_waitcnt lgkmcnt(0)')
                e(f's_mov_b32 s{64 + 2 * self.pending}, s{sTO}'); self.pending += 1; self.stamp_names.append('RTretries')
                e(f's_mov_b32 s{64 + 2 * self.pending}, s{sMODE}'); self.pending += 1; self.stamp_names.append('RTmode')
            self.flush()

COST = {'mfma': 16, 'valu': 5, 'trans': 8, 'salu': 4, 'dsr': 8, 'dsw': 14, 'vld': 8, 'vst': 8, 'smem': 4, 'wait': 4, 'nop': 4, 'barrier': 20, 'branch': 4, 'label': 0, 'pseudo': 0}

def prefetch_pass(ins, total, fillq):
    first = {}; last = {}
    for pos, i in enumerate(ins):
        if i.meta and i.meta[0] == 'W':
            first.setdefault(i.meta[1], pos); last[i.meta[1]] = pos
    out = []; n = 0; t = 0; tl = -10**9; allow = False; hold = False; curbase = None; free_valu = 0
    fq = []
    def issue(n):
        nonlocal curbase
        idx = n % NFRAG
        if os.environ.get('EXP') == 'now': return
        if os.environ.get('EXP') == 'l2': idx = idx % 48
        base = (idx >> 2) * 4096
        if base != curbase:
            out.append(I(f's_mov_b32 s{sWO}, {WS_W + base}')); curbase = base
        sl = 4 * (n % POOL)
        out.append(I(f'buffer_load_dwordx4 a[{sl}:{sl + 3}], v{vW}, {WSR}, s{sWO} offen offset:{(idx & 3) * 1024}' + os.environ.get('WFLAG', '')))
    def issue_fill():
        txt, tag, _ = fq.pop(0); k = 0
        for l in txt.split('\n'):
            if l.startswith('@'): continue
            x = I(l, tag if 'store' in l else None); out.append(x); k += x.kind in ('vst', 'vld')
        return k
    ncode = [0]
    def issue_code():
        out.append(I(f's_mov_b32 s{sCO}, {ncode[0] * 8192}'))
        out.append(I(f'buffer_load_dword a{aDUM + 2}, v{vSEC}, s[{sCODE}:{sCODE + 3}], s{sCO} offen')); ncode[0] += 1
    free = lambda n, pos: n < total and (n < POOL or last[n - POOL] < pos)
    forced = []; needed = []; turn = True
    for pos, i in enumerate(ins):
        if i.kind == 'pseudo':
            a = i.op.split()
            if a[0] == '@nopf_on': allow = False; continue
            if a[0] == '@nopf_off': allow = True; continue
            if a[0] == '@hold_on': hold = True; continue
            if a[0] == '@hold_off': hold = False; continue
            if a[0] == '@time': t += int(a[1]); continue
            if a[0] == '@code':
                if CODEPF:
                    for _ in range(int(a[1])): issue_code()
                continue
            if a[0] == '@fills': fq.extend(fillq[int(a[1])]); continue
            if a[0] == '@fills_flush':
                while fq and (len(a) == 1 or any(x[2] == a[1] for x in fq)): t += 64 * issue_fill(); tl = t
                continue
            if a[0] == '@pf_burst':
                for _ in range(int(a[1])):
                    if free(n, pos): issue(n); n += 1; tl = t
                continue
            if a[0] == '@pf_need':
                nxt = min(g for g, fp in first.items() if fp > pos)
                while n < nxt + NEED and free(n, pos): issue(n); needed.append(n); n += 1; tl = t; t += 64
                continue
        if i.meta and i.meta[0] == 'W':
            while n <= i.meta[1]:
                assert free(n, pos) and not hold, (n, pos)
                issue(n); forced.append(n); n += 1; tl = t
            if first[i.meta[1]] == pos and not hold:
                while n < i.meta[1] + LOOK and free(n, pos): issue(n); needed.append(n); n += 1; tl = t
        if allow and not hold and t - tl >= PACE and i.kind not in ('branch', 'label'):
            if CODEPF and len(out) * 7.2 > (ncode[0] - CODEPF) * 8192 and ncode[0] * 8192 < len(ins) * 8: issue_code(); tl = t
            elif fq and ('scc', 0) not in i.rd and (turn or not free(n, pos)): tl = t + 64 * (issue_fill() - 1); turn = False
            elif free(n, pos): issue(n); n += 1; tl = t; turn = True
        out.append(i)
        if i.kind in ('vld', 'vst'): tl = max(tl, t)
        c = COST[i.kind]
        if i.kind == 'mfma': free_valu = 8
        elif free_valu > 0 and i.kind != 'pseudo':
            d = min(c, free_valu); free_valu -= d; c -= d
        t += c
    assert n == total and not fq, n
    return out, (forced, len(needed)), t

def main_kernel(name, stamps=False):
    g = Gen(stamps)
    g.prologue()
    g.layer(0)
    if os.environ.get('LAYERS') == '1':
        g.tick('L1.end'); g.tick('RT1'); g.flush()
    else: g.layer(1)
    g.e('L_main_exit:')
    g.e('s_endpgm')
    ins, forced, t = prefetch_pass(g.p.ins, int(os.environ.get('LAYERS', 2)) * NFRAG, g.fillq)
    ins = insert_nops(insert_waits(ins))
    info = dict(n=len(ins), forced=forced, est=t, stamps=list(g.stamp_names), nops=sum(i.states() for i in ins if i.kind == 'nop'))
    return f'{name}:\nL_main_begin:\n' + render(ins) + '\n' + '\n'.join(g.ool) + '\nL_main_end:\n', info
```

```python
from asmgen import *
from layout import *

import os
PREP_BLOCK = 256
N_SW = 320
N_XW = 256
PREP_GRID = N_SW + N_XW
PREP_LDS = 32768
PST = os.environ.get('PST', '')

def vdiv(p, dst, src, div, maxval):
    mul, sh = magic(div, maxval)
    p.e(f'v_mul_u32_u24 v{dst}, {mul}, v{src}')
    p.e(f'v_lshrrev_b32 v{dst}, {sh}, v{dst}')

def vrem(p, dst, src, quo, div):
    p.e(f'v_mul_u32_u24 v{dst}, {div}, v{quo}')
    p.e(f'v_sub_u32 v{dst}, v{src}, v{dst}')

def swizzle_role(kind):
    p = Prog()
    WB = {'n80': 320, 'w3': 384, 'w4': 160}[kind]
    NR = 192 if kind == 'w4' else 80
    NP = NR * WB // 1024
    NU = 12 if kind == 'w3' else 10
    p.e('v_lshrrev_b32 v1, 6, v0')
    p.e('v_readfirstlane_b32 s18, v1')
    p.e('v_and_b32 v2, 63, v0')
    p.e(f's_mul_i32 s24, s13, {NR}')
    p.e('s_mul_i32 s24, s24, s12')
    p.e(f's_mul_i32 s25, s14, {WB}')
    p.e('s_add_u32 s24, s24, s25')
    p.e('s_add_u32 s24, s24, s17')
    p.e('s_lshl_b32 s25, s18, 10')
    p.e('v_mov_b32 v9, 0x80000000')
    for t in range(8):
        if 4 * t >= NP: break
        p.e(f'v_add_u32 v3, {256 * t}, v0')
        vdiv(p, 4, 3, WB // 16, 2047)
        p.e(f'v_mul_u32_u24 v5, {WB // 16}, v4')
        p.e('v_sub_u32 v5, v3, v5')
        p.e('v_mul_lo_u32 v4, v4, s12')
        p.e(f'v_lshl_add_u32 v{10 + t}, v5, 4, v4')
        if 4 * t + 3 >= NP:
            p.e(f'v_cmp_gt_u32 vcc, {NP * 64}, v3')
            p.e(f'v_cndmask_b32 v{10 + t}, v9, v{10 + t}, vcc')
        p.e(f's_add_u32 m0, s25, {4096 * t}')
        p.e(f'buffer_load_dwordx4 v{10 + t}, s[8:11], s24 offen lds')
    p.e('v_lshrrev_b32 v3, 4, v2')
    p.e('v_bfe_u32 v4, v2, 2, 2')
    p.e('v_and_b32 v5, 3, v2')
    p.e(f'v_mul_u32_u24 v5, {96 if kind == "w3" else 40}, v5')
    p.e(f'v_mad_u32_u24 v6, v3, {48 if kind == "w4" else 20}, v4')
    p.e(f'v_mul_u32_u24 v6, {WB}, v6')
    p.e('v_add_u32 v6, v6, v5')
    if kind != 'w4':
        p.e('v_and_b32 v7, 1, v3')
        p.e('v_mad_u32_u24 v7, v7, 20, v4')
        p.e(f'v_mul_u32_u24 v7, {WB}, v7')
        p.e('v_add_u32 v7, v7, v5')
    p.e('v_lshlrev_b32 v8, 4, v2')
    p.e('v_cmp_gt_u32 vcc, 32, v2')
    p.e('v_cndmask_b32 v20, v9, v8, vcc')
    p.e('v_mov_b32 v21, 0x3f803f80')
    p.e('v_cndmask_b32 v28, 0, v21, vcc')
    for k in range(4): p.e(f'v_mov_b32 v{24 + k}, v21')
    for k in range(1, 4): p.e(f'v_mov_b32 v{28 + k}, v28')
    p.e(f'v_mul_u32_u24 v22, {48 if kind == "w3" else 20}, v3')
    p.e('v_and_b32 v23, 15, v2')
    p.e('v_cmp_eq_u32 s[30:31], 0, v23')
    p.e('s_cmp_eq_u32 s16, -1')
    p.e('s_cselect_b64 s[30:31], 0, s[30:31]')
    p.e('s_and_b32 s26, s13, 1')
    p.e('s_lshr_b32 s27, s13, 1')
    p.e('s_waitcnt vmcnt(0)')
    p.e('s_barrier')
    for t in range(3):
        lab = f'L_prep_{kind}_end'
        p.e(f's_add_u32 s28, s18, {4 * t}')
        if 4 * t + 3 >= NU:
            p.e(f's_cmp_ge_u32 s28, {NU}')
            p.e(f's_cbranch_scc1 {lab}')
        if kind == 'n80':
            p.e('s_cmp_ge_u32 s28, 5')
            p.e('s_cselect_b32 s35, 1, 0')
            p.e('s_mul_i32 s34, s35, 5')
            p.e('s_sub_u32 s34, s28, s34')
            p.e('s_mul_i32 s29, s35, 160')
            p.e('s_lshl_b32 s36, s34, 3')
            p.e('s_add_u32 s29, s29, s36')
            p.e('s_lshl_b32 s32, s14, 1')
            p.e('s_add_u32 s32, s32, s35')
            p.e('s_mul_i32 s33, s34, 5')
        elif kind == 'w3':
            p.e('s_mov_b32 s34, s28')
            p.e('s_lshl_b32 s29, s34, 3')
            p.e('s_mov_b32 s32, s14')
            p.e('s_mul_i32 s33, s34, 5')
        else:
            p.e('s_lshr_b32 s34, s28, 1')
            p.e('s_and_b32 s35, s28, 1')
            p.e(f's_mul_i32 s29, s35, {24 * WB}')
            p.e('s_lshl_b32 s36, s34, 3')
            p.e('s_add_u32 s29, s29, s36')
            p.e('s_mov_b32 s32, s14')
            p.e('s_mul_i32 s33, s28, 3')
            p.e('s_mul_i32 s36, s26, 30')
            p.e('s_add_u32 s33, s33, s36')
        B = 32 + 16 * t
        p.e('v_add_u32 v18, s29, v6')
        if kind != 'w4': p.e('v_add_u32 v19, s29, v7')
        for f in range(3):
            for hf in range(2):
                if kind != 'w4' and f == 2: a, off = 19, (16 + 40 * hf) * WB
                else: a, off = 18, (8 * f + 4 * hf) * WB
                p.e(f'ds_read_b64_tr_b16 v[{B + 4 * f + 2 * hf}:{B + 4 * f + 2 * hf + 1}], v{a} offset:{off}')
        p.e('s_lshl_b32 s36, s32, 2')
        p.e('s_add_u32 s36, s36, s27')
        p.e(f's_mul_i32 s36, s36, {NFRAG}')
        p.e('s_add_u32 s36, s36, s15')
        p.e('s_add_u32 s36, s36, s33')
        p.e('s_lshl_b32 s36, s36, 10')
        if kind == 'w4':
            for f in range(3): p.e(f'buffer_store_dwordx4 v[{B + 4 * f}:{B + 4 * f + 3}], v8, s[20:23], s36 offen offset:{1024 * f}{PST}')
        else:
            p.e('s_mul_i32 s37, s26, 3072')
            p.e('s_add_u32 s37, s37, s36')
            p.e('s_lshl_b32 s38, s26, 9')
            p.e('s_add_u32 s38, s38, s36')
            p.e(f'buffer_store_dwordx4 v[{B}:{B + 3}], v8, s[20:23], s37 offen{PST}')
            p.e(f'buffer_store_dwordx4 v[{B + 4}:{B + 7}], v8, s[20:23], s37 offen offset:1024{PST}')
            p.e(f'buffer_store_dwordx4 v[{B + 8}:{B + 11}], v20, s[20:23], s38 offen offset:2048{PST}')
            p.e(f'v_mfma_f32_16x16x32_bf16 v[{B + 12}:{B + 15}], v[{B}:{B + 3}], v[24:27], 0')
            p.e(f'v_mfma_f32_16x16x32_bf16 v[{B + 12}:{B + 15}], v[{B + 4}:{B + 7}], v[24:27], v[{B + 12}:{B + 15}]')
            p.e(f'v_mfma_f32_16x16x32_bf16 v[{B + 12}:{B + 15}], v[{B + 8}:{B + 11}], v[28:31], v[{B + 12}:{B + 15}]')
            p.e('s_lshl_b32 s39, s34, 2')
            p.e('s_add_u32 s39, s39, s16')
            p.e('v_add_u32 v16, s39, v22')
            p.e('v_lshrrev_b32 v17, 7, v16')
            p.e('v_and_b32 v16, 127, v16')
            p.e('v_lshlrev_b32 v16, 2, v16')
            p.e('v_lshl_add_u32 v16, v17, 12, v16')
            p.e('v_cndmask_b32 v16, v9, v16, s[30:31]')
            p.e('s_lshl_b32 s39, s32, 14')
            p.e('s_lshl_b32 s40, s13, 9')
            p.e('s_add_u32 s39, s39, s40')
            p.e(f's_add_u32 s39, s39, {WS_CSUM}')
            p.e(f'buffer_store_dwordx4 v[{B + 12}:{B + 15}], v16, s[20:23], s39 offen')
    p.e(f'L_prep_{kind}_end:')
    p.e('s_endpgm')
    return finalize(p)

def stats_reduce(p, a, b, t):
    p.e(f'v_permlane16_swap_b32 v{a}, v{b}')
    p.e(f'v_add_f32 v{a}, v{a}, v{b}')
    p.e(f'v_mov_b32 v{t}, v{a}')
    p.e(f'v_permlane32_swap_b32 v{a}, v{t}')
    p.e(f'v_add_f32 v{a}, v{a}, v{t}')

def x_role():
    p = Prog()
    p.e('v_lshrrev_b32 v1, 6, v0')
    p.e('s_lshl_b32 s17, s16, 2')
    p.e('v_add_u32 v1, s17, v1')
    p.e('v_and_b32 v2, 63, v0')
    p.e('v_and_b32 v3, 15, v2')
    p.e('v_lshrrev_b32 v4, 4, v2')
    p.e('v_lshrrev_b32 v5, 3, v1')
    p.e('v_and_b32 v6, 7, v1')
    p.e('v_lshl_add_u32 v7, v5, 4, v3')
    p.e('v_mul_u32_u24 v7, 1280, v7')
    p.e('v_mul_u32_u24 v8, 160, v6')
    p.e('v_mul_u32_u24 v9, 40, v4')
    p.e('v_add3_u32 v7, v7, v8, v9')
    p.e('buffer_load_dwordx4 v[16:19], v7, s[8:11], 0 offen')
    p.e('buffer_load_dwordx4 v[20:23], v7, s[8:11], 0 offen offset:16')
    p.e('buffer_load_dwordx2 v[24:25], v7, s[8:11], 0 offen offset:32')
    p.e(f's_mul_i32 s17, s16, {PREP_BLOCK}')
    p.e('v_add_u32 v30, s17, v0')
    p.e('v_min_u32 v31, 8191, v30')
    vdiv(p, 32, 31, 12, 8191); vrem(p, 33, 31, 32, 12)
    vdiv(p, 34, 32, 20, 700); vrem(p, 35, 32, 34, 20)
    p.e('v_mul_u32_u24 v34, 800, v34')
    p.e('v_mul_u32_u24 v36, 80, v33')
    p.e('v_lshl_add_u32 v34, v35, 1, v34')
    p.e('v_add_u32 v34, v34, v36')
    p.e('v_mov_b32 v37, 0x80000000')
    p.e('v_cmp_gt_u32 vcc, 10, v33')
    p.e('v_cndmask_b32 v34, v37, v34, vcc')
    p.e('buffer_load_ushort v38, v34, s[12:15], 0 offen')
    p.e('buffer_load_ushort v39, v34, s[12:15], 0 offen offset:40')
    p.e('v_lshlrev_b32 v40, 2, v30')
    p.e(f'v_cmp_gt_u32 vcc, {256 * 16}, v30')
    p.e('v_cndmask_b32 v41, v37, v40, vcc')
    p.e('v_mov_b32 v42, 0')
    p.e(f's_mov_b32 s18, {WS_ID}')
    p.e('buffer_store_dword v42, v41, s[20:23], s18 offen')
    p.e('v_lshrrev_b32 v10, 2, v5')
    p.e(f's_mov_b32 s18, {ARENA}')
    p.e('v_mul_lo_u32 v13, v10, s18')
    p.e('v_and_b32 v10, 3, v5')
    p.e(f'v_mul_u32_u24 v10, {TILE}, v10')
    p.e('v_lshrrev_b32 v11, 1, v6')
    p.e('v_mul_u32_u24 v11, 5120, v11')
    p.e('v_add3_u32 v10, v10, v11, v13')
    p.e('v_lshl_add_u32 v10, v2, 4, v10')
    p.e('v_and_b32 v12, 1, v6')
    p.e('v_mul_u32_u24 v11, 3072, v12')
    p.e('v_add_u32 v11, v11, v10')
    p.e('v_lshl_add_u32 v12, v12, 9, v10')
    p.e('v_cmp_gt_u32 s[24:25], 32, v2')
    p.e('v_cndmask_b32 v12, v37, v12, s[24:25]')
    p.e('v_cmp_gt_u32 vcc, 1024, v1')
    p.e('v_cndmask_b32 v11, v37, v11, vcc')
    p.e('v_cndmask_b32 v12, v37, v12, vcc')
    p.e(f's_mov_b32 s18, {act("X")}')
    p.e('buffer_store_dwordx4 v[16:19], v11, s[20:23], s18 offen')
    p.e('buffer_store_dwordx4 v[20:23], v11, s[20:23], s18 offen offset:1024')
    p.e('v_mov_b32 v52, v24')
    p.e('v_mov_b32 v53, v25')
    p.e('v_permlane32_swap_b32 v52, v54')
    p.e('v_permlane32_swap_b32 v53, v55')
    p.e('buffer_store_dwordx4 v[52:55], v12, s[20:23], s18 offen offset:2048')
    p.e('v_mov_b32 v44, 0')
    p.e('v_mov_b32 v45, 0')
    for k in range(10):
        p.e(f'v_lshlrev_b32 v46, 16, v{16 + k}')
        p.e(f'v_and_b32 v47, 0xffff0000, v{16 + k}')
        p.e('v_add_f32 v44, v44, v46')
        p.e('v_fmac_f32 v45, v46, v46')
        p.e('v_add_f32 v44, v44, v47')
        p.e('v_fmac_f32 v45, v47, v47')
    stats_reduce(p, 44, 45, 46)
    p.e('v_lshl_add_u32 v47, v6, 9, v13')
    p.e('v_and_b32 v48, 3, v5')
    p.e('v_lshl_add_u32 v48, v48, 4, v3')
    p.e('v_lshl_add_u32 v47, v48, 3, v47')
    p.e('v_and_b32 v48, 1, v4')
    p.e('v_lshl_add_u32 v47, v48, 2, v47')
    p.e('v_cndmask_b32 v47, v37, v47, vcc')
    p.e(f's_mov_b32 s18, {stat("X")}')
    p.e('buffer_store_dword v44, v47, s[20:23], s18 offen')
    p.e('v_lshl_or_b32 v38, v39, 16, v38')
    p.e('v_cmp_gt_u32 vcc, 7680, v30')
    p.e('v_cndmask_b32 v41, v37, v40, vcc')
    p.e(f's_mov_b32 s18, {WS_WPHI}')
    p.e('buffer_store_dword v38, v41, s[20:23], s18 offen')
    p.e('s_endpgm')
    return finalize(p)

def srd(d, ptr, size):
    return f"""  s_mov_b32 s{d}, s{ptr}
  s_and_b32 s{d + 1}, s{ptr + 1}, 0xffff
  s_mov_b32 s{d + 2}, {size}
  s_mov_b32 s{d + 3}, 0x00020000"""

def prep_kernel(name):
    def sel(lo, ptr, size, stride, col, fb, cs):
        return f"""{srd(8, ptr, size)}
  s_mov_b32 s12, {stride}
  s_mov_b32 s17, {col}
  s_mov_b32 s15, {fb}
  s_mov_b32 s16, {cs}
  s_cmp_lt_u32 s19, {lo + 1}
  s_cbranch_scc1 L_prep_n80"""
    t = f"""{name}:
  s_cmp_ge_u32 s2, {PREP_GRID}
  s_cbranch_scc1 L_prep_exit
  s_load_dwordx16 s[44:59], s[0:1], 0
  s_load_dwordx8 s[60:67], s[0:1], 64
  s_waitcnt lgkmcnt(0)
{srd(20, 66, WS_SIZE)}
  s_cmp_ge_u32 s2, {N_SW}
  s_cbranch_scc1 L_prep_x
  s_and_b32 s13, s2, 7
  s_cmp_ge_u32 s2, 256
  s_cbranch_scc1 L_prep_w4
  s_cmp_ge_u32 s2, 192
  s_cbranch_scc1 L_prep_w3
  s_bfe_u32 s14, s2, 0x20003
  s_lshr_b32 s19, s2, 5
{sel(0, 46, D * 3 * D * 2, 3840, 1280, FB_K, CS_K)}
{sel(1, 46, D * 3 * D * 2, 3840, 2560, FB_V, CS_V)}
{sel(2, 46, D * 3 * D * 2, 3840, 0, FB_Q, CS_Q)}
{sel(3, 50, D * D * 2, 1280, 0, FB_WO, -1)}
{sel(4, 54, D * D * 2, 1280, 0, FB_W1, CS_W1)}
{sel(5, 56, D * D * 2, 1280, 0, FB_W2, -1)}
L_prep_n80:
{swizzle_role('n80')}
L_prep_w3:
{srd(8, 58, D * F * 2)}
  s_mov_b32 s12, 3072
  s_bfe_u32 s14, s2, 0x30003
  s_mov_b32 s17, 0
  s_mov_b32 s15, {FB_W3}
  s_mov_b32 s16, {CS_W3}
{swizzle_role('w3')}
L_prep_w4:
{srd(8, 60, F * D * 2)}
  s_mov_b32 s12, 1280
  s_bfe_u32 s14, s2, 0x30003
  s_mov_b32 s17, 0
  s_mov_b32 s15, {FB_W4}
  s_mov_b32 s16, -1
{swizzle_role('w4')}
L_prep_x:
{srd(8, 44, S * D * 2)}
{srd(12, 48, H * DH * DH * 2)}
  s_sub_u32 s16, s2, {N_SW}
{x_role()}
L_prep_exit:
  s_endpgm
"""
    return t
```
